```python
import torch

def _softmax(x, axis=-1):
    return torch.softmax(x, dim=axis)

def _gelu(x):
    return torch.nn.functional.gelu(x, approximate='tanh')

def _silu(x):
    return torch.nn.functional.silu(x)

def _sigmoid(x):
    return torch.sigmoid(x)

def _layernorm(x, axis=-1, eps=1e-05):
    m = x.mean(dim=axis, keepdim=True)
    v = x.var(dim=axis, keepdim=True, unbiased=False)
    return (x - m) / torch.sqrt(v + eps)

def _scatter_add(tgt, idx, src, axis=0):
    return tgt.clone().index_add_(axis, idx, src)

def _segment_sum(src, seg, n):
    out = torch.zeros((n,) + src.shape[1:], dtype=src.dtype)
    return out.index_add_(0, seg, src)

def _pad(x, pw):
    flat = tuple((v for pair in reversed(pw) for v in pair))
    return torch.nn.functional.pad(x, flat)
kernel_name = 'standalone__tree_speculative_verify_tree_attention_over_candidate_token_tree__sampling'

def setup_inputs():

    _w = lambda a: (lambda t: t.to(torch.bfloat16) if t.is_floating_point() else t)(torch.as_tensor(a))
    B, Hq, Hkv, T, C, D = (32, 32, 8, 8, 2048, 128)
    tree_mask = torch.zeros((B, T, T), dtype=float)
    for b in range(B):
        parent = torch.zeros(T, dtype=torch.int64)
        for i in range(1, T):
            parent[i] = int(torch.randint(0, i, (1,)).item())
        for i in range(T):
            j = i
            tree_mask[b, i, j] = 1.0
            while j > 0:
                j = parent[j]
                tree_mask[b, i, j] = 1.0
    return {'q': _w((lambda *s: torch.randn(*s, dtype=torch.bfloat16) * 0.8)(B, Hq, T, D)), 'k_cache': _w((lambda *s: torch.randn(*s, dtype=torch.bfloat16) * 0.8)(B, Hkv, C, D)), 'v_cache': _w((lambda *s: torch.randn(*s, dtype=torch.bfloat16) * 0.05)(B, Hkv, C, D)), 'k_tree': _w((lambda *s: torch.randn(*s, dtype=torch.bfloat16) * 0.8)(B, Hkv, T, D)), 'v_tree': _w((lambda *s: torch.randn(*s, dtype=torch.bfloat16) * 0.05)(B, Hkv, T, D)), 'tree_mask': _w(tree_mask)}

def reference(q, k_cache, v_cache, k_tree, v_tree, tree_mask):
    B, Hq, T, D = q.shape
    Hkv, C = (k_cache.shape[1], k_cache.shape[2])
    rep = Hq // Hkv
    kc = (lambda x, n, axis: torch.repeat_interleave(x, n, dim=axis))(k_cache, rep, axis=1)
    vc = (lambda x, n, axis: torch.repeat_interleave(x, n, dim=axis))(v_cache, rep, axis=1)
    kt = (lambda x, n, axis: torch.repeat_interleave(x, n, dim=axis))(k_tree, rep, axis=1)
    vt = (lambda x, n, axis: torch.repeat_interleave(x, n, dim=axis))(v_tree, rep, axis=1)
    k = torch.concatenate([kc, kt], axis=2)
    v = torch.concatenate([vc, vt], axis=2)
    scale = D ** (-0.5)
    scores = torch.einsum('bhqd,bhkd->bhqk', q, k) * scale
    ctx_mask = torch.ones((B, 1, T, C), dtype=scores.dtype)
    tm = tree_mask[:, None, :, :].clone()
    full_mask = torch.concatenate([ctx_mask, tm], axis=-1)
    scores = scores + (1.0 - full_mask) * -1000000000.0
    p = _softmax(scores, axis=-1)
    return torch.einsum('bhqk,bhkd->bhqd', p, v)
```

```python
import struct, sys, math
NAME = "standalone__tree_speculative_verify_tree_attention_over_candidate_token_tree__sampling"
def f32hex(x): return "0x%08x" % struct.unpack("<I", struct.pack("<f", x))[0]
SCALE = 128 ** -0.5
C = SCALE * math.log2(math.e)
BIG = 1e9 / SCALE

NT = ""
for a in sys.argv[1:]:
    if a.startswith("pol="): NT = " " + a[4:].replace("+", " ")

out = []
def e(s): out.append("    " + s)
def lab(s): out.append(s + ":")
def q(r): return "v[%d:%d]" % (r, r + 3)
def d2(r): return "v[%d:%d]" % (r, r + 1)

vKd = [1, 2, 3, 4]; vKr = [5, 6, 7, 8]; vVo = 9
vm = [10, 11]; vl = [12, 13]; val = [14, 15]; vmc = [16, 17]
vt = [18, 19, 20, 21, 22, 23]
def Q(qb, s): return 24 + (qb * 4 + s) * 4
def O(blk, qb): return 56 + (blk * 2 + qb) * 4
def V(h, n): return 120 + h * 32 + n * 4
def S(h, kb, qb): return 184 + ((h * 2 + kb) * 2 + qb) * 4
def T(i): return 216 + 4 * i
sK, sV, sQ, sKT, sVT, sMK, sO = 20, 24, 28, 32, 36, 40, 44
def srd(r): return "s[%d:%d]" % (r, r + 3)
sW = 48; sLds = 49; sIt = 50; sA0, sA1, sB0, sB1 = 52, 53, 54, 55
sC = 56; sSelLo = 57; sSelHi = 58; sBig = 59; sTmp = 60; sTmp2 = 61; sBase = 62; sOOB = 63

hdr = open("cdna_kernels/%s.s.ref" % NAME).read().split("\n")
for l in hdr:
    if l.startswith("; @launch"): break
    out.append(l)
LDS_BYTES = 131072 + 8192
out.append("; @launch grid=(256,1,1) block=(512,1,1) lds=%d" % LDS_BYTES)
out.append('.amdgcn_target "amdgcn-amd-amdhsa--gfx950"')
out.append(".text")
out.append(".globl %s_kernel" % NAME)
out.append(".p2align 8")
out.append(".type %s_kernel,@function" % NAME)
lab("%s_kernel" % NAME)
e("s_cmp_ge_u32 s2, 256")
e("s_cbranch_scc1 L_end")
e("s_load_dwordx8 s[4:11], s[0:1], 0")
e("s_load_dwordx4 s[12:15], s[0:1], 32")
e("s_load_dwordx2 s[16:17], s[0:1], 48")
e("v_lshrrev_b32 v18, 6, v0")
e("v_and_b32 v0, 63, v0")
e("v_readfirstlane_b32 s%d, v18" % sW)
e("v_and_b32 v19, 15, v0")
e("v_lshrrev_b32 v20, 4, v0")
e("v_xor_b32 v21, v19, v20")
e("v_lshlrev_b32 v21, 4, v21")
e("v_lshl_add_u32 v22, v20, 8, v21")
e("v_mov_b32 v%d, v22" % vKd[0])
for j in range(1, 4):
    e("v_xor_b32 v%d, %d, v22" % (vKd[j], 64 * j))
e("s_lshl_b32 s%d, s%d, 14" % (sLds, sW))
e("v_lshl_add_u32 v22, v19, 8, v21")
e("v_add_u32 v22, s%d, v22" % sLds)
e("v_mov_b32 v%d, v22" % vKr[0])
for s in range(1, 4):
    e("v_xor_b32 v%d, %d, v22" % (vKr[s], 64 * s))
e("v_lshlrev_b32 v22, 4, v19")
e("v_lshl_add_u32 v%d, v20, 10, v22" % vVo)
e("v_lshlrev_b32 v22, 4, v20")
e("v_lshl_add_u32 v23, v19, 8, v22")
e("s_lshl_b32 s%d, s2, 19" % sBase)
e("s_lshl_b32 s%d, s%d, 13" % (sTmp, sW))
e("s_add_u32 s%d, s%d, s%d" % (sBase, sBase, sTmp))
e("s_add_u32 s%d, s%d, 4096" % (sA1, sBase))
e("s_add_u32 s%d, s%d, 65536" % (sB0, sBase))
e("s_add_u32 s%d, s%d, 69632" % (sB1, sBase))
e("s_mov_b32 s%d, s%d" % (sA0, sBase))
e("s_lshl_b32 s%d, s2, 13" % sTmp)
e("s_add_u32 s%d, s%d, 4096" % (sTmp2, sTmp))
e("s_mov_b32 s%d, %s" % (sC, f32hex(C)))
e("s_mov_b32 s%d, 0x05040100" % sSelLo)
e("s_mov_b32 s%d, 0x07060302" % sSelHi)
e("s_mov_b32 s%d, %s" % (sBig, f32hex(BIG)))
e("s_mov_b32 s%d, 0x80000000" % sOOB)
e("s_waitcnt lgkmcnt(0)")
def mksrd(r, p, nbytes):
    e("s_mov_b32 s%d, s%d" % (r, p))
    e("s_and_b32 s%d, s%d, 0xffff" % (r + 1, p + 1))
    e("s_mov_b32 s%d, 0x%x" % (r + 2, nbytes))
    e("s_mov_b32 s%d, 0x00020000" % (r + 3))
mksrd(sQ, 4, 32 * 32 * 8 * 128 * 2)
mksrd(sK, 6, 32 * 8 * 2048 * 128 * 2)
mksrd(sV, 8, 32 * 8 * 2048 * 128 * 2)
for qb in range(2):
    for s in range(4):
        e("buffer_load_dwordx4 %s, v23, %s, s%d offen offset:%d" % (q(Q(qb, s)), srd(sQ), sTmp if qb == 0 else sTmp2, 64 * s))
mksrd(sKT, 10, 32 * 8 * 8 * 128 * 2)
mksrd(sVT, 12, 32 * 8 * 8 * 128 * 2)
mksrd(sMK, 14, 32 * 8 * 8 * 2)
mksrd(sO, 16, 32 * 32 * 8 * 128 * 2)
e("s_cmp_lg_u32 s%d, 0" % sW)
e("s_cbranch_scc1 L_notree_ld")
e("s_lshl_b32 s%d, s2, 11" % sTmp)
e("v_mov_b32 v22, s%d" % sOOB)
e("v_cmp_gt_u32 vcc, 8, v19")
e("s_nop 1")
e("v_cndmask_b32 v21, v22, v23, vcc")
for s in range(4):
    e("buffer_load_dwordx4 %s, v21, %s, s%d offen offset:%d" % (q(T(s)), srd(sKT), sTmp, 64 * s))
e("v_cmp_gt_u32 vcc, 2, v20")
e("s_nop 1")
e("v_cndmask_b32 v21, v22, v%d, vcc" % vVo)
for n in range(4):
    e("buffer_load_dwordx4 %s, v21, %s, s%d offen offset:%d" % (q(T(4 + n)), srd(sVT), sTmp, 256 * n))
e("v_and_b32 v21, 7, v19")
e("v_lshlrev_b32 v21, 4, v21")
e("v_lshl_add_u32 v21, v20, 3, v21")
e("v_cndmask_b32 v21, v22, v21, vcc")
e("s_lshr_b32 s%d, s2, 3" % sTmp)
e("s_lshl_b32 s%d, s%d, 7" % (sTmp, sTmp))
e("buffer_load_dwordx2 %s, v21, %s, s%d offen" % (d2(vt[0]), srd(sMK), sTmp))
lab("L_notree_ld")

def dmaK(h, s0, s1):
    e("s_add_u32 m0, s%d, %d" % (sLds, h * 8192))
    e("s_nop 0")
    for j in range(4):
        e("buffer_load_dwordx4 v%d, %s, s%d offen offset:%d%s lds" % (vKd[j], srd(sK), s0, 1024 * j, NT))
    e("s_add_u32 m0, s%d, %d" % (sLds, h * 8192 + 4096))
    e("s_nop 0")
    for j in range(4):
        e("buffer_load_dwordx4 v%d, %s, s%d offen offset:%d%s lds" % (vKd[j], srd(sK), s1, 1024 * j, NT))
def loadV(h, s0, s1):
    for n in range(8):
        e("buffer_load_dwordx4 %s, v%d, %s, s%d offen offset:%d%s" % (q(V(h, n)), vVo, srd(sV), s0 if n < 4 else s1, 256 * (n % 4), NT))
dmaK(0, sA0, sA1); dmaK(1, sB0, sB1); loadV(0, sA0, sA1); loadV(1, sB0, sB1)

def xreduce(op, regs, tmps):
    for sw in ("v_permlane32_swap_b32", "v_permlane16_swap_b32"):
        for r, t in zip(regs, tmps): e("v_mov_b32 v%d, v%d" % (t, r))
        e("s_nop 1")
        for r, t in zip(regs, tmps): e("%s v%d, v%d" % (sw, r, t))
        e("s_nop 0")
        for r, t in zip(regs, tmps): e("%s v%d, v%d, v%d" % (op, r, r, t))

e("s_mov_b32 s%d, 0" % sIt)
e("s_cmp_lg_u32 s%d, 0" % sW)
e("s_cbranch_scc1 L_notree")
e("s_waitcnt vmcnt(32)")
for s in range(4):
    for qb in range(2):
        e("v_mfma_f32_16x16x32_bf16 %s, %s, %s, %s" % (q(S(0, 0, qb)), q(T(s)), q(Q(qb, s)), "0" if s == 0 else q(S(0, 0, qb))))
B = S(1, 0, 0)
e("v_lshlrev_b32 v%d, 16, v%d" % (B, vt[0]))
e("v_and_b32 v%d, 0xffff0000, v%d" % (B + 1, vt[0]))
e("v_lshlrev_b32 v%d, 16, v%d" % (B + 2, vt[1]))
e("v_and_b32 v%d, 0xffff0000, v%d" % (B + 3, vt[1]))
e("v_mov_b32 v%d, s%d" % (vt[2], sBig))
for r in range(4):
    e("v_fma_f32 v%d, v%d, v%d, -v%d" % (B + r, B + r, vt[2], vt[2]))
e("s_nop 3")
for qb in range(2):
    for r in range(4):
        e("v_add_f32 v%d, v%d, v%d" % (S(0, 0, qb) + r, S(0, 0, qb) + r, B + r))
for qb in range(2):
    s0 = S(0, 0, qb)
    e("v_max3_f32 v%d, v%d, v%d, v%d" % (vm[qb], s0, s0 + 1, s0 + 2))
    e("v_max_f32 v%d, v%d, v%d" % (vm[qb], vm[qb], s0 + 3))
xreduce("v_max_f32", vm, vt[0:2])
for qb in range(2):
    e("v_mul_f32 v%d, s%d, v%d" % (vmc[qb], sC, vm[qb]))
for qb in range(2):
    for r in range(4):
        x = S(0, 0, qb) + r
        e("v_fma_f32 v%d, v%d, s%d, -v%d" % (x, x, sC, vmc[qb]))
for qb in range(2):
    for r in range(4):
        x = S(0, 0, qb) + r
        e("v_exp_f32 v%d, v%d" % (x, x))
e("s_nop 0")
for qb in range(2):
    s0 = S(0, 0, qb)
    e("v_add_f32 v%d, v%d, v%d" % (vl[qb], s0, s0 + 1))
    e("v_add_f32 v%d, v%d, v%d" % (vt[qb], s0 + 2, s0 + 3))
    e("v_add_f32 v%d, v%d, v%d" % (vl[qb], vl[qb], vt[qb]))
    e("v_cvt_pk_bf16_f32 v%d, v%d, v%d" % (s0, s0, s0 + 1))
    e("v_cvt_pk_bf16_f32 v%d, v%d, v%d" % (s0 + 1, s0 + 2, s0 + 3))
TB = S(1, 0, 0)
for blk in range(8):
    j, ee = blk // 2, blk % 2
    for qq in range(2):
        e("v_perm_b32 v%d, v%d, v%d, s%d" % (TB + 2 * blk + qq, T(4 + 2 * qq + 1) + j, T(4 + 2 * qq) + j, sSelHi if ee else sSelLo))
e("s_nop 1")
for blk in range(8):
    for qb in range(2):
        e("v_mfma_f32_16x16x16_bf16 %s, %s, %s, 0" % (q(O(blk, qb)), d2(TB + 2 * blk), d2(S(0, 0, qb))))
e("s_branch L_loop")
lab("L_notree")
for r in range(64): e("v_mov_b32 v%d, 0" % (56 + r))
for qb in range(2):
    e("v_mov_b32 v%d, 0xff800000" % vm[qb])
    e("v_mov_b32 v%d, 0" % vl[qb])

lab("L_loop")
e("s_add_u32 s%d, s%d, 131072" % (sBase, sBase))
e("s_cmp_lt_u32 s%d, 3" % sIt)
e("s_cselect_b32 s%d, s%d, s%d" % (sA0, sBase, sOOB))
e("s_add_u32 s%d, s%d, 4096" % (sA1, sA0))
e("s_add_u32 s%d, s%d, 65536" % (sB0, sA0))
e("s_add_u32 s%d, s%d, 69632" % (sB1, sA0))
def qk(h, s0, s1):
    e("s_waitcnt vmcnt(24)")
    for kb in range(2):
        for s in range(4):
            e("ds_read_b128 %s, v%d offset:%d" % (q(T(kb * 4 + s)), vKr[s], h * 8192 + kb * 4096))
    for kb in range(2):
        for s in range(4):
            e("s_waitcnt lgkmcnt(%d)" % (7 - kb * 4 - s))
            for qb in range(2):
                e("v_mfma_f32_16x16x32_bf16 %s, %s, %s, %s" % (q(S(h, kb, qb)), q(T(kb * 4 + s)), q(Q(qb, s)), "0" if s == 0 else q(S(h, kb, qb))))
    dmaK(h, s0, s1)
qk(0, sA0, sA1)
qk(1, sB0, sB1)
for qb in range(2):
    vals = [S(h, kb, qb) + r for h in range(2) for kb in range(2) for r in range(4)]
    e("v_max3_f32 v%d, v%d, v%d, v%d" % (vt[qb], vals[0], vals[1], vm[qb]))
    for k in range(2, 16, 2):
        e("v_max3_f32 v%d, v%d, v%d, v%d" % (vt[qb], vals[k], vals[k + 1], vt[qb]))
xreduce("v_max_f32", vt[0:2], vt[2:4])
for qb in range(2):
    e("v_sub_f32 v%d, v%d, v%d" % (val[qb], vm[qb], vt[qb]))
    e("v_mul_f32 v%d, s%d, v%d" % (vmc[qb], sC, vt[qb]))
    e("v_mul_f32 v%d, s%d, v%d" % (val[qb], sC, val[qb]))
    e("v_mov_b32 v%d, v%d" % (vm[qb], vt[qb]))
for qb in range(2):
    e("v_exp_f32 v%d, v%d" % (val[qb], val[qb]))
for h in range(2):
    for kb in range(2):
        for qb in range(2):
            for r in range(4):
                x = S(h, kb, qb) + r
                e("v_fma_f32 v%d, v%d, s%d, -v%d" % (x, x, sC, vmc[qb]))
for h in range(2):
    for kb in range(2):
        for qb in range(2):
            for r in range(4):
                x = S(h, kb, qb) + r
                e("v_exp_f32 v%d, v%d" % (x, x))
for blk in range(8):
    for qb in range(2):
        for hh in range(2):
            o = O(blk, qb) + 2 * hh
            e("v_pk_mul_f32 %s, %s, %s op_sel:[0,%d] op_sel_hi:[1,%d]" % (d2(o), d2(o), d2(val[0]), qb, qb))
for qb in range(2):
    vals = [S(h, kb, qb) + r for h in range(2) for kb in range(2) for r in range(4)]
    e("v_add_f32 v%d, v%d, v%d" % (vt[qb], vals[0], vals[1]))
    e("v_add_f32 v%d, v%d, v%d" % (vt[2 + qb], vals[2], vals[3]))
    for k in range(4, 16, 2):
        e("v_add_f32 v%d, v%d, v%d" % (vt[qb], vt[qb], vals[k]))
        e("v_add_f32 v%d, v%d, v%d" % (vt[2 + qb], vt[2 + qb], vals[k + 1]))
    e("v_add_f32 v%d, v%d, v%d" % (vt[qb], vt[qb], vt[2 + qb]))
    e("v_fma_f32 v%d, v%d, v%d, v%d" % (vl[qb], vl[qb], val[qb], vt[qb]))
for h in range(2):
    for qb in range(2):
        a, b = S(h, 0, qb), S(h, 1, qb)
        e("v_cvt_pk_bf16_f32 v%d, v%d, v%d" % (a, a, a + 1))
        e("v_cvt_pk_bf16_f32 v%d, v%d, v%d" % (a + 1, a + 2, a + 3))
        e("v_cvt_pk_bf16_f32 v%d, v%d, v%d" % (a + 2, b, b + 1))
        e("v_cvt_pk_bf16_f32 v%d, v%d, v%d" % (a + 3, b + 2, b + 3))
def pv(h, s0, s1):
    e("s_waitcnt vmcnt(24)")
    def perms(blk):
        j, ee = blk // 2, blk % 2
        for qq in range(4):
            e("v_perm_b32 v%d, v%d, v%d, s%d" % (T(blk) + qq, V(h, 2 * qq + 1) + j, V(h, 2 * qq) + j, sSelHi if ee else sSelLo))
    perms(0)
    for blk in range(8):
        if blk < 7: perms(blk + 1)
        else: loadV(h, s0, s1)
        for qb in range(2):
            e("v_mfma_f32_16x16x32_bf16 %s, %s, %s, %s" % (q(O(blk, qb)), q(T(blk)), q(S(h, 0, qb)), q(O(blk, qb))))
pv(0, sA0, sA1)
pv(1, sB0, sB1)
e("s_add_u32 s%d, s%d, 1" % (sIt, sIt))
e("s_cmp_lt_u32 s%d, 4" % sIt)
e("s_cbranch_scc1 L_loop")

xreduce("v_add_f32", vl, vt[0:2])
e("v_lshlrev_b32 v%d, 4, v0" % vt[2])
e("v_add_u32 v%d, s%d, v%d" % (vt[3], sLds, vt[2]))
e("s_lshl_b32 s%d, s%d, 10" % (sTmp, sW))
e("s_add_u32 s%d, s%d, 131072" % (sTmp, sTmp))
e("v_add_u32 v%d, s%d, v%d" % (vt[4], sTmp, vt[2]))
e("v_mov_b32 v%d, v%d" % (T(0), vm[0]))
e("v_mov_b32 v%d, v%d" % (T(0) + 1, vl[0]))
e("v_mov_b32 v%d, v%d" % (T(0) + 2, vm[1]))
e("v_mov_b32 v%d, v%d" % (T(0) + 3, vl[1]))
e("s_waitcnt vmcnt(0)")
e("ds_write_b128 v%d, %s" % (vt[4], q(T(0))))
for qb in range(2):
    for r in range(4):
        u = qb * 4 + r
        for blk in range(8):
            e("v_mov_b32 v%d, v%d" % (120 + u * 8 + blk, O(blk, qb) + r))
        for hh in range(2):
            e("ds_write_b128 v%d, %s offset:%d" % (vt[3], q(120 + u * 8 + hh * 4), u * 2048 + hh * 1024))
e("s_lshr_b32 s%d, s%d, 2" % (sTmp, sW))
e("s_lshl_b32 s%d, s%d, 3" % (sTmp2, sTmp))
e("s_add_u32 s%d, s%d, 131072" % (sTmp2, sTmp2))
e("v_add_u32 v%d, s%d, v%d" % (vt[4], sTmp2, vt[2]))
e("s_lshl_b32 s%d, s%d, 11" % (sTmp2, sW))
e("v_add_u32 v%d, s%d, v%d" % (vt[3], sTmp2, vt[2]))
e("v_add_u32 v%d, 0x10000, v%d" % (vt[5], vt[3]))
e("v_and_b32 v1, 15, v0")
e("v_lshrrev_b32 v2, 4, v0")
e("v_lshlrev_b32 v1, 8, v1")
e("v_lshl_add_u32 v1, v2, 6, v1")
e("s_lshl_b32 s%d, s%d, 12" % (sTmp, sTmp))
e("s_and_b32 s%d, s%d, 3" % (sTmp2, sW))
e("s_lshl_b32 s%d, s%d, 4" % (sTmp2, sTmp2))
e("s_add_u32 s%d, s%d, s%d" % (sTmp, sTmp, sTmp2))
e("s_lshl_b32 s%d, s2, 13" % sTmp2)
e("s_add_u32 s%d, s%d, s%d" % (sTmp, sTmp, sTmp2))
e("s_waitcnt lgkmcnt(0)")
e("s_barrier")
SM = 24
for w in range(8):
    e("ds_read_b64 %s, v%d offset:%d" % (d2(SM + 2 * w), vt[4], w * 1024))
OR = 56
for w in range(8):
    for hh in range(2):
        e("ds_read_b128 %s, v%d offset:%d" % (q(OR + w * 8 + hh * 4), vt[3] if w < 4 else vt[5], (w % 4) * 16384 + hh * 1024))
e("s_waitcnt lgkmcnt(15)")
e("v_max3_f32 v2, v%d, v%d, v%d" % (SM, SM + 2, SM + 4))
e("v_max3_f32 v2, v2, v%d, v%d" % (SM + 6, SM + 8))
e("v_max3_f32 v2, v2, v%d, v%d" % (SM + 10, SM + 12))
e("v_max_f32 v2, v2, v%d" % (SM + 14))
for w in range(8):
    e("v_sub_f32 v%d, v%d, v2" % (SM + 2 * w, SM + 2 * w))
for w in range(8):
    e("v_mul_f32 v%d, s%d, v%d" % (SM + 2 * w, sC, SM + 2 * w))
for w in range(8):
    e("v_exp_f32 v%d, v%d" % (SM + 2 * w, SM + 2 * w))
e("s_nop 0")
e("v_mul_f32 v3, v%d, v%d" % (SM, SM + 1))
for w in range(1, 8):
    e("v_fmac_f32 v3, v%d, v%d" % (SM + 2 * w, SM + 2 * w + 1))
e("v_rcp_f32 v3, v3")
for w in range(8):
    e("s_waitcnt lgkmcnt(%d)" % (14 - 2 * w))
    for k in range(8):
        if w == 0: e("v_mul_f32 v%d, v%d, v%d" % (40 + k, SM, OR + k))
        else: e("v_fmac_f32 v%d, v%d, v%d" % (40 + k, SM + 2 * w, OR + w * 8 + k))
for k in range(8):
    e("v_mul_f32 v%d, v%d, v3" % (40 + k, 40 + k))
for k in range(4):
    e("v_cvt_pk_bf16_f32 v%d, v%d, v%d" % (48 + k, 40 + 2 * k, 41 + 2 * k))
e("buffer_store_dwordx4 v[48:51], v1, %s, s%d offen" % (srd(sO), sTmp))
lab("L_end")
e("s_endpgm")
out.append('.section .rodata,"a"')
out.append(".p2align 6")
out.append(".amdhsa_kernel %s_kernel" % NAME)
out.append("  .amdhsa_next_free_vgpr 248")
out.append("  .amdhsa_next_free_sgpr 72")
out.append("  .amdhsa_accum_offset 248")
out.append("  .amdhsa_group_segment_fixed_size 0")
out.append("  .amdhsa_kernarg_size 72")
out.append("  .amdhsa_user_sgpr_count 2")
out.append("  .amdhsa_user_sgpr_kernarg_segment_ptr 1")
out.append("  .amdhsa_system_sgpr_workgroup_id_x 1")
out.append(".end_amdhsa_kernel")
print("\n".join(out))
```

```python
import struct, sys, math
NAME = "standalone__tree_speculative_verify_tree_attention_over_candidate_token_tree__sampling"
def f32hex(x): return "0x%08x" % struct.unpack("<I", struct.pack("<f", x))[0]
SCALE = 128 ** -0.5
C = SCALE * math.log2(math.e)
BIG = 1e9 / SCALE

NTK = ""; NTV = ""
for a in sys.argv[1:]:
    if a.startswith("pol="): NTK = NTV = " " + a[4:].replace("+", " ")
    if a.startswith("polK="): NTK = " " + a[5:].replace("+", " ")
    if a.startswith("polV="): NTV = " " + a[5:].replace("+", " ")

out = []
def e(s): out.append("    " + s)
def lab(s): out.append(s + ":")
def q(r): return "v[%d:%d]" % (r, r + 3)
def d2(r): return "v[%d:%d]" % (r, r + 1)

vKd = [1, 2, 3, 4]; vKr = [5, 6, 7, 8]; vVo = 9
vm = [10, 11]; vl = [12, 13]; val = [14, 15]; vmc = [16, 17]
vt = [18, 19, 20, 21, 22, 23]
def Q(qb, s): return 24 + (qb * 4 + s) * 4
def O(blk, qb): return 56 + (blk * 2 + qb) * 4
def V(h, n): return 120 + h * 32 + n * 4
def S(h, kb, qb): return 184 + ((h * 2 + kb) * 2 + qb) * 4
def T(i): return 216 + 4 * i
sK, sV, sQ, sKT, sVT, sMK, sO = 20, 24, 28, 32, 36, 40, 44
def srd(r): return "s[%d:%d]" % (r, r + 3)
sW = 48; sLds = 49; sIt = 50; sA0, sA1, sB0, sB1 = 52, 53, 54, 55
sC = 56; sSelLo = 57; sSelHi = 58; sBig = 59; sTmp = 60; sTmp2 = 61; sBase = 62; sOOB = 63

hdr = open("cdna_kernels/%s.s.ref" % NAME).read().split("\n")
for l in hdr:
    if l.startswith("; @launch"): break
    out.append(l)
LDS_BYTES = 131072 + 8192
out.append("; @launch grid=(256,1,1) block=(512,1,1) lds=%d" % LDS_BYTES)
out.append('.amdgcn_target "amdgcn-amd-amdhsa--gfx950"')
out.append(".text")
out.append(".globl %s_kernel" % NAME)
out.append(".p2align 8")
out.append(".type %s_kernel,@function" % NAME)
lab("%s_kernel" % NAME)
e("s_cmp_ge_u32 s2, 256")
e("s_cbranch_scc1 L_end")
e("s_load_dwordx8 s[4:11], s[0:1], 0")
e("s_load_dwordx4 s[12:15], s[0:1], 32")
e("s_load_dwordx2 s[16:17], s[0:1], 48")
e("v_lshrrev_b32 v18, 6, v0")
e("v_and_b32 v0, 63, v0")
e("v_readfirstlane_b32 s%d, v18" % sW)
e("v_and_b32 v19, 15, v0")
e("v_lshrrev_b32 v20, 4, v0")
e("v_xor_b32 v21, v19, v20")
e("v_lshlrev_b32 v21, 4, v21")
e("v_lshl_add_u32 v22, v20, 8, v21")
e("v_mov_b32 v%d, v22" % vKd[0])
for j in range(1, 4):
    e("v_xor_b32 v%d, %d, v22" % (vKd[j], 64 * j))
e("s_lshl_b32 s%d, s%d, 14" % (sLds, sW))
e("v_lshl_add_u32 v22, v19, 8, v21")
e("v_add_u32 v22, s%d, v22" % sLds)
e("v_mov_b32 v%d, v22" % vKr[0])
for s in range(1, 4):
    e("v_xor_b32 v%d, %d, v22" % (vKr[s], 64 * s))
e("v_lshlrev_b32 v22, 4, v19")
e("v_lshl_add_u32 v%d, v20, 10, v22" % vVo)
e("v_lshlrev_b32 v22, 4, v20")
e("v_lshl_add_u32 v23, v19, 8, v22")
e("s_lshl_b32 s%d, s2, 19" % sBase)
e("s_lshl_b32 s%d, s%d, 13" % (sTmp, sW))
e("s_add_u32 s%d, s%d, s%d" % (sBase, sBase, sTmp))
e("s_add_u32 s%d, s%d, 4096" % (sA1, sBase))
e("s_add_u32 s%d, s%d, 65536" % (sB0, sBase))
e("s_add_u32 s%d, s%d, 69632" % (sB1, sBase))
e("s_mov_b32 s%d, s%d" % (sA0, sBase))
e("s_lshl_b32 s%d, s2, 13" % sTmp)
e("s_add_u32 s%d, s%d, 4096" % (sTmp2, sTmp))
e("s_mov_b32 s%d, %s" % (sC, f32hex(C)))
e("s_mov_b32 s%d, 0x05040100" % sSelLo)
e("s_mov_b32 s%d, 0x07060302" % sSelHi)
e("s_mov_b32 s%d, %s" % (sBig, f32hex(BIG)))
e("s_mov_b32 s%d, 0x80000000" % sOOB)
e("s_waitcnt lgkmcnt(0)")
def mksrd(r, p, nbytes):
    e("s_mov_b32 s%d, s%d" % (r, p))
    e("s_and_b32 s%d, s%d, 0xffff" % (r + 1, p + 1))
    e("s_mov_b32 s%d, 0x%x" % (r + 2, nbytes))
    e("s_mov_b32 s%d, 0x00020000" % (r + 3))
mksrd(sQ, 4, 32 * 32 * 8 * 128 * 2)
mksrd(sK, 6, 32 * 8 * 2048 * 128 * 2)
mksrd(sV, 8, 32 * 8 * 2048 * 128 * 2)
for qb in range(2):
    for s in range(4):
        e("buffer_load_dwordx4 %s, v23, %s, s%d offen offset:%d" % (q(Q(qb, s)), srd(sQ), sTmp if qb == 0 else sTmp2, 64 * s))
mksrd(sKT, 10, 32 * 8 * 8 * 128 * 2)
mksrd(sVT, 12, 32 * 8 * 8 * 128 * 2)
mksrd(sMK, 14, 32 * 8 * 8 * 2)
mksrd(sO, 16, 32 * 32 * 8 * 128 * 2)
e("s_cmp_lg_u32 s%d, 0" % sW)
e("s_cbranch_scc1 L_notree_ld")
e("s_lshl_b32 s%d, s2, 11" % sTmp)
e("v_mov_b32 v22, s%d" % sOOB)
e("v_cmp_gt_u32 vcc, 8, v19")
e("s_nop 1")
e("v_cndmask_b32 v21, v22, v23, vcc")
for s in range(4):
    e("buffer_load_dwordx4 %s, v21, %s, s%d offen offset:%d" % (q(T(s)), srd(sKT), sTmp, 64 * s))
e("v_cmp_gt_u32 vcc, 2, v20")
e("s_nop 1")
e("v_cndmask_b32 v21, v22, v%d, vcc" % vVo)
for n in range(4):
    e("buffer_load_dwordx4 %s, v21, %s, s%d offen offset:%d" % (q(T(4 + n)), srd(sVT), sTmp, 256 * n))
e("v_and_b32 v21, 7, v19")
e("v_lshlrev_b32 v21, 4, v21")
e("v_lshl_add_u32 v21, v20, 3, v21")
e("v_cndmask_b32 v21, v22, v21, vcc")
e("s_lshr_b32 s%d, s2, 3" % sTmp)
e("s_lshl_b32 s%d, s%d, 7" % (sTmp, sTmp))
e("buffer_load_dwordx2 %s, v21, %s, s%d offen" % (d2(vt[0]), srd(sMK), sTmp))
lab("L_notree_ld")

def dmaK(h, s0, s1):
    e("s_add_u32 m0, s%d, %d" % (sLds, h * 8192))
    e("s_nop 0")
    for j in range(4):
        e("buffer_load_dwordx4 v%d, %s, s%d offen offset:%d%s lds" % (vKd[j], srd(sK), s0, 1024 * j, NTK))
    e("s_add_u32 m0, s%d, %d" % (sLds, h * 8192 + 4096))
    e("s_nop 0")
    for j in range(4):
        e("buffer_load_dwordx4 v%d, %s, s%d offen offset:%d%s lds" % (vKd[j], srd(sK), s1, 1024 * j, NTK))
def loadV(h, s0, s1):
    for n in range(8):
        e("buffer_load_dwordx4 %s, v%d, %s, s%d offen offset:%d%s" % (q(V(h, n)), vVo, srd(sV), s0 if n < 4 else s1, 256 * (n % 4), NTV))
dmaK(0, sA0, sA1); dmaK(1, sB0, sB1); loadV(0, sA0, sA1); loadV(1, sB0, sB1)

def xreduce(op, regs, tmps):
    for sw in ("v_permlane32_swap_b32", "v_permlane16_swap_b32"):
        for r, t in zip(regs, tmps): e("v_mov_b32 v%d, v%d" % (t, r))
        e("s_nop 1")
        for r, t in zip(regs, tmps): e("%s v%d, v%d" % (sw, r, t))
        e("s_nop 0")
        for r, t in zip(regs, tmps): e("%s v%d, v%d, v%d" % (op, r, r, t))

e("s_mov_b32 s%d, 0" % sIt)
e("s_cmp_lg_u32 s%d, 0" % sW)
e("s_cbranch_scc1 L_notree")
e("s_waitcnt vmcnt(32)")
for s in range(4):
    for qb in range(2):
        e("v_mfma_f32_16x16x32_bf16 %s, %s, %s, %s" % (q(S(0, 0, qb)), q(T(s)), q(Q(qb, s)), "0" if s == 0 else q(S(0, 0, qb))))
B = S(1, 0, 0)
e("v_lshlrev_b32 v%d, 16, v%d" % (B, vt[0]))
e("v_and_b32 v%d, 0xffff0000, v%d" % (B + 1, vt[0]))
e("v_lshlrev_b32 v%d, 16, v%d" % (B + 2, vt[1]))
e("v_and_b32 v%d, 0xffff0000, v%d" % (B + 3, vt[1]))
e("v_mov_b32 v%d, s%d" % (vt[2], sBig))
for r in range(4):
    e("v_fma_f32 v%d, v%d, v%d, -v%d" % (B + r, B + r, vt[2], vt[2]))
e("s_nop 3")
for qb in range(2):
    for r in range(4):
        e("v_add_f32 v%d, v%d, v%d" % (S(0, 0, qb) + r, S(0, 0, qb) + r, B + r))
for qb in range(2):
    s0 = S(0, 0, qb)
    e("v_max3_f32 v%d, v%d, v%d, v%d" % (vm[qb], s0, s0 + 1, s0 + 2))
    e("v_max_f32 v%d, v%d, v%d" % (vm[qb], vm[qb], s0 + 3))
xreduce("v_max_f32", vm, vt[0:2])
for qb in range(2):
    e("v_mul_f32 v%d, s%d, v%d" % (vmc[qb], sC, vm[qb]))
for qb in range(2):
    for r in range(4):
        x = S(0, 0, qb) + r
        e("v_fma_f32 v%d, v%d, s%d, -v%d" % (x, x, sC, vmc[qb]))
for qb in range(2):
    for r in range(4):
        x = S(0, 0, qb) + r
        e("v_exp_f32 v%d, v%d" % (x, x))
e("s_nop 0")
for qb in range(2):
    s0 = S(0, 0, qb)
    e("v_add_f32 v%d, v%d, v%d" % (vl[qb], s0, s0 + 1))
    e("v_add_f32 v%d, v%d, v%d" % (vt[qb], s0 + 2, s0 + 3))
    e("v_add_f32 v%d, v%d, v%d" % (vl[qb], vl[qb], vt[qb]))
    e("v_cvt_pk_bf16_f32 v%d, v%d, v%d" % (s0, s0, s0 + 1))
    e("v_cvt_pk_bf16_f32 v%d, v%d, v%d" % (s0 + 1, s0 + 2, s0 + 3))
TB = S(1, 0, 0)
for blk in range(8):
    j, ee = blk // 2, blk % 2
    for qq in range(2):
        e("v_perm_b32 v%d, v%d, v%d, s%d" % (TB + 2 * blk + qq, T(4 + 2 * qq + 1) + j, T(4 + 2 * qq) + j, sSelHi if ee else sSelLo))
e("s_nop 1")
for blk in range(8):
    for qb in range(2):
        e("v_mfma_f32_16x16x16_bf16 %s, %s, %s, 0" % (q(O(blk, qb)), d2(TB + 2 * blk), d2(S(0, 0, qb))))
e("s_branch L_loop")
lab("L_notree")
for r in range(64): e("v_mov_b32 v%d, 0" % (56 + r))
for qb in range(2):
    e("v_mov_b32 v%d, 0xff800000" % vm[qb])
    e("v_mov_b32 v%d, 0" % vl[qb])

lab("L_loop")
e("s_add_u32 s%d, s%d, 131072" % (sBase, sBase))
e("s_cmp_lt_u32 s%d, 3" % sIt)
e("s_cselect_b32 s%d, s%d, s%d" % (sA0, sBase, sOOB))
e("s_add_u32 s%d, s%d, 4096" % (sA1, sA0))
e("s_add_u32 s%d, s%d, 65536" % (sB0, sA0))
e("s_add_u32 s%d, s%d, 69632" % (sB1, sA0))
def qk(h, s0, s1):
    e("s_waitcnt vmcnt(24)")
    for kb in range(2):
        for s in range(4):
            e("ds_read_b128 %s, v%d offset:%d" % (q(T(kb * 4 + s)), vKr[s], h * 8192 + kb * 4096))
    for kb in range(2):
        for s in range(4):
            e("s_waitcnt lgkmcnt(%d)" % (7 - kb * 4 - s))
            for qb in range(2):
                e("v_mfma_f32_16x16x32_bf16 %s, %s, %s, %s" % (q(S(h, kb, qb)), q(T(kb * 4 + s)), q(Q(qb, s)), "0" if s == 0 else q(S(h, kb, qb))))
    dmaK(h, s0, s1)
qk(0, sA0, sA1)
qk(1, sB0, sB1)
for qb in range(2):
    vals = [S(h, kb, qb) + r for h in range(2) for kb in range(2) for r in range(4)]
    e("v_max3_f32 v%d, v%d, v%d, v%d" % (vt[qb], vals[0], vals[1], vm[qb]))
    for k in range(2, 16, 2):
        e("v_max3_f32 v%d, v%d, v%d, v%d" % (vt[qb], vals[k], vals[k + 1], vt[qb]))
xreduce("v_max_f32", vt[0:2], vt[2:4])
for qb in range(2):
    e("v_sub_f32 v%d, v%d, v%d" % (val[qb], vm[qb], vt[qb]))
    e("v_mul_f32 v%d, s%d, v%d" % (vmc[qb], sC, vt[qb]))
    e("v_mul_f32 v%d, s%d, v%d" % (val[qb], sC, val[qb]))
    e("v_mov_b32 v%d, v%d" % (vm[qb], vt[qb]))
for qb in range(2):
    e("v_exp_f32 v%d, v%d" % (val[qb], val[qb]))
for h in range(2):
    for kb in range(2):
        for qb in range(2):
            for r in range(4):
                x = S(h, kb, qb) + r
                e("v_fma_f32 v%d, v%d, s%d, -v%d" % (x, x, sC, vmc[qb]))
for h in range(2):
    for kb in range(2):
        for qb in range(2):
            for r in range(4):
                x = S(h, kb, qb) + r
                e("v_exp_f32 v%d, v%d" % (x, x))
for blk in range(8):
    for qb in range(2):
        for hh in range(2):
            o = O(blk, qb) + 2 * hh
            e("v_pk_mul_f32 %s, %s, %s op_sel:[0,%d] op_sel_hi:[1,%d]" % (d2(o), d2(o), d2(val[0]), qb, qb))
for qb in range(2):
    vals = [S(h, kb, qb) + r for h in range(2) for kb in range(2) for r in range(4)]
    e("v_add_f32 v%d, v%d, v%d" % (vt[qb], vals[0], vals[1]))
    e("v_add_f32 v%d, v%d, v%d" % (vt[2 + qb], vals[2], vals[3]))
    for k in range(4, 16, 2):
        e("v_add_f32 v%d, v%d, v%d" % (vt[qb], vt[qb], vals[k]))
        e("v_add_f32 v%d, v%d, v%d" % (vt[2 + qb], vt[2 + qb], vals[k + 1]))
    e("v_add_f32 v%d, v%d, v%d" % (vt[qb], vt[qb], vt[2 + qb]))
    e("v_fma_f32 v%d, v%d, v%d, v%d" % (vl[qb], vl[qb], val[qb], vt[qb]))
for h in range(2):
    for qb in range(2):
        a, b = S(h, 0, qb), S(h, 1, qb)
        e("v_cvt_pk_bf16_f32 v%d, v%d, v%d" % (a, a, a + 1))
        e("v_cvt_pk_bf16_f32 v%d, v%d, v%d" % (a + 1, a + 2, a + 3))
        e("v_cvt_pk_bf16_f32 v%d, v%d, v%d" % (a + 2, b, b + 1))
        e("v_cvt_pk_bf16_f32 v%d, v%d, v%d" % (a + 3, b + 2, b + 3))
def pv(h, s0, s1):
    e("s_waitcnt vmcnt(24)")
    def perms(blk):
        j, ee = blk // 2, blk % 2
        for qq in range(4):
            e("v_perm_b32 v%d, v%d, v%d, s%d" % (T(blk) + qq, V(h, 2 * qq + 1) + j, V(h, 2 * qq) + j, sSelHi if ee else sSelLo))
    perms(0)
    for blk in range(8):
        if blk < 7: perms(blk + 1)
        else: loadV(h, s0, s1)
        for qb in range(2):
            e("v_mfma_f32_16x16x32_bf16 %s, %s, %s, %s" % (q(O(blk, qb)), q(T(blk)), q(S(h, 0, qb)), q(O(blk, qb))))
pv(0, sA0, sA1)
pv(1, sB0, sB1)
e("s_add_u32 s%d, s%d, 1" % (sIt, sIt))
e("s_cmp_lt_u32 s%d, 4" % sIt)
e("s_cbranch_scc1 L_loop")

xreduce("v_add_f32", vl, vt[0:2])
e("v_lshlrev_b32 v%d, 4, v0" % vt[2])
e("v_add_u32 v%d, s%d, v%d" % (vt[3], sLds, vt[2]))
e("s_lshl_b32 s%d, s%d, 10" % (sTmp, sW))
e("s_add_u32 s%d, s%d, 131072" % (sTmp, sTmp))
e("v_add_u32 v%d, s%d, v%d" % (vt[4], sTmp, vt[2]))
e("v_mov_b32 v%d, v%d" % (T(0), vm[0]))
e("v_mov_b32 v%d, v%d" % (T(0) + 1, vl[0]))
e("v_mov_b32 v%d, v%d" % (T(0) + 2, vm[1]))
e("v_mov_b32 v%d, v%d" % (T(0) + 3, vl[1]))
e("s_waitcnt vmcnt(0)")
e("ds_write_b128 v%d, %s" % (vt[4], q(T(0))))
for qb in range(2):
    for r in range(4):
        u = qb * 4 + r
        for blk in range(8):
            e("v_mov_b32 v%d, v%d" % (120 + u * 8 + blk, O(blk, qb) + r))
        for hh in range(2):
            e("ds_write_b128 v%d, %s offset:%d" % (vt[3], q(120 + u * 8 + hh * 4), u * 2048 + hh * 1024))
e("s_lshr_b32 s%d, s%d, 2" % (sTmp, sW))
e("s_lshl_b32 s%d, s%d, 3" % (sTmp2, sTmp))
e("s_add_u32 s%d, s%d, 131072" % (sTmp2, sTmp2))
e("v_add_u32 v%d, s%d, v%d" % (vt[4], sTmp2, vt[2]))
e("s_lshl_b32 s%d, s%d, 11" % (sTmp2, sW))
e("v_add_u32 v%d, s%d, v%d" % (vt[3], sTmp2, vt[2]))
e("v_add_u32 v%d, 0x10000, v%d" % (vt[5], vt[3]))
e("v_and_b32 v1, 15, v0")
e("v_lshrrev_b32 v2, 4, v0")
e("v_lshlrev_b32 v1, 8, v1")
e("v_lshl_add_u32 v1, v2, 6, v1")
e("s_lshl_b32 s%d, s%d, 12" % (sTmp, sTmp))
e("s_and_b32 s%d, s%d, 3" % (sTmp2, sW))
e("s_lshl_b32 s%d, s%d, 4" % (sTmp2, sTmp2))
e("s_add_u32 s%d, s%d, s%d" % (sTmp, sTmp, sTmp2))
e("s_lshl_b32 s%d, s2, 13" % sTmp2)
e("s_add_u32 s%d, s%d, s%d" % (sTmp, sTmp, sTmp2))
e("s_waitcnt lgkmcnt(0)")
e("s_barrier")
SM = 24
for w in range(8):
    e("ds_read_b64 %s, v%d offset:%d" % (d2(SM + 2 * w), vt[4], w * 1024))
OR = 56
for w in range(8):
    for hh in range(2):
        e("ds_read_b128 %s, v%d offset:%d" % (q(OR + w * 8 + hh * 4), vt[3] if w < 4 else vt[5], (w % 4) * 16384 + hh * 1024))
e("s_waitcnt lgkmcnt(15)")
e("v_max3_f32 v2, v%d, v%d, v%d" % (SM, SM + 2, SM + 4))
e("v_max3_f32 v2, v2, v%d, v%d" % (SM + 6, SM + 8))
e("v_max3_f32 v2, v2, v%d, v%d" % (SM + 10, SM + 12))
e("v_max_f32 v2, v2, v%d" % (SM + 14))
for w in range(8):
    e("v_sub_f32 v%d, v%d, v2" % (SM + 2 * w, SM + 2 * w))
for w in range(8):
    e("v_mul_f32 v%d, s%d, v%d" % (SM + 2 * w, sC, SM + 2 * w))
for w in range(8):
    e("v_exp_f32 v%d, v%d" % (SM + 2 * w, SM + 2 * w))
e("s_nop 0")
e("v_mul_f32 v3, v%d, v%d" % (SM, SM + 1))
for w in range(1, 8):
    e("v_fmac_f32 v3, v%d, v%d" % (SM + 2 * w, SM + 2 * w + 1))
e("v_rcp_f32 v3, v3")
for w in range(8):
    e("s_waitcnt lgkmcnt(%d)" % (14 - 2 * w))
    for k in range(8):
        if w == 0: e("v_mul_f32 v%d, v%d, v%d" % (40 + k, SM, OR + k))
        else: e("v_fmac_f32 v%d, v%d, v%d" % (40 + k, SM + 2 * w, OR + w * 8 + k))
for k in range(8):
    e("v_mul_f32 v%d, v%d, v3" % (40 + k, 40 + k))
for k in range(4):
    e("v_cvt_pk_bf16_f32 v%d, v%d, v%d" % (48 + k, 40 + 2 * k, 41 + 2 * k))
e("buffer_store_dwordx4 v[48:51], v1, %s, s%d offen" % (srd(sO), sTmp))
lab("L_end")
e("s_endpgm")
out.append('.section .rodata,"a"')
out.append(".p2align 6")
out.append(".amdhsa_kernel %s_kernel" % NAME)
out.append("  .amdhsa_next_free_vgpr 248")
out.append("  .amdhsa_next_free_sgpr 72")
out.append("  .amdhsa_accum_offset 248")
out.append("  .amdhsa_group_segment_fixed_size 0")
out.append("  .amdhsa_kernarg_size 72")
out.append("  .amdhsa_user_sgpr_count 2")
out.append("  .amdhsa_user_sgpr_kernarg_segment_ptr 1")
out.append("  .amdhsa_system_sgpr_workgroup_id_x 1")
out.append(".end_amdhsa_kernel")
print("\n".join(out))
```

```python
import struct, sys, math
NAME = "standalone__tree_speculative_verify_tree_attention_over_candidate_token_tree__sampling"
def f32hex(x): return "0x%08x" % struct.unpack("<I", struct.pack("<f", x))[0]
SCALE = 128 ** -0.5
C = SCALE * math.log2(math.e)
BIG = 1e9 / SCALE

NTK = ""; NTV = ""; TWICE = "twice" in sys.argv; STAMP = "stamp" in sys.argv
for a in sys.argv[1:]:
    if a.startswith("pol="): NTK = NTV = " " + a[4:].replace("+", " ")
    if a.startswith("polK="): NTK = " " + a[5:].replace("+", " ")
    if a.startswith("polV="): NTV = " " + a[5:].replace("+", " ")

out = []
def e(s): out.append("    " + s)
def lab(s): out.append(s + ":")
def q(r): return "v[%d:%d]" % (r, r + 3)
def d2(r): return "v[%d:%d]" % (r, r + 1)

vKd = [1, 2, 3, 4]; vKr = [5, 6, 7, 8]; vVo = 9
vm = [10, 11]; vl = [12, 13]; val = [14, 15]; vmc = [16, 17]
vt = [18, 19, 20, 21, 22, 23]
def Q(qb, s): return 24 + (qb * 4 + s) * 4
def O(blk, qb): return 56 + (blk * 2 + qb) * 4
def V(h, n): return 120 + h * 32 + n * 4
def S(h, kb, qb): return 184 + ((h * 2 + kb) * 2 + qb) * 4
def T(i): return 216 + 4 * i
sK, sV, sQ, sKT, sVT, sMK, sO = 20, 24, 28, 32, 36, 40, 44
def srd(r): return "s[%d:%d]" % (r, r + 3)
sW = 48; sLds = 49; sIt = 50; sA0, sA1, sB0, sB1 = 52, 53, 54, 55
sC = 56; sSelLo = 57; sSelHi = 58; sBig = 59; sTmp = 60; sTmp2 = 61; sBase = 62; sOOB = 63

hdr = open("cdna_kernels/%s.s.ref" % NAME).read().split("\n")
for l in hdr:
    if l.startswith("; @launch"): break
    out.append(l)
LDS_BYTES = 131072 + 8192
out.append("; @launch grid=(256,1,1) block=(512,1,1) lds=%d" % LDS_BYTES)
out.append('.amdgcn_target "amdgcn-amd-amdhsa--gfx950"')
out.append(".text")
out.append(".globl %s_kernel" % NAME)
out.append(".p2align 8")
out.append(".type %s_kernel,@function" % NAME)
lab("%s_kernel" % NAME)
e("s_cmp_ge_u32 s2, 256")
e("s_cbranch_scc1 L_end")
e("s_load_dwordx8 s[4:11], s[0:1], 0")
e("s_load_dwordx4 s[12:15], s[0:1], 32")
e("s_load_dwordx2 s[16:17], s[0:1], 48")
def stamp(k):
    if STAMP:
        e("s_memrealtime s[66:67]")
        e("s_waitcnt lgkmcnt(0)")
        e("s_mov_b32 s%d, s66" % (72 + k))
if STAMP:
    e("s_load_dwordx2 s[68:69], s[0:1], 56")
    e("s_memrealtime s[66:67]")
e("v_lshrrev_b32 v18, 6, v0")
e("v_and_b32 v0, 63, v0")
e("v_readfirstlane_b32 s%d, v18" % sW)
if TWICE:
    e("s_mov_b32 s64, 0")
    lab("L_restart")
e("v_and_b32 v19, 15, v0")
e("v_lshrrev_b32 v20, 4, v0")
e("v_xor_b32 v21, v19, v20")
e("v_lshlrev_b32 v21, 4, v21")
e("v_lshl_add_u32 v22, v20, 8, v21")
e("v_mov_b32 v%d, v22" % vKd[0])
for j in range(1, 4):
    e("v_xor_b32 v%d, %d, v22" % (vKd[j], 64 * j))
e("s_lshl_b32 s%d, s%d, 14" % (sLds, sW))
e("v_lshl_add_u32 v22, v19, 8, v21")
e("v_add_u32 v22, s%d, v22" % sLds)
e("v_mov_b32 v%d, v22" % vKr[0])
for s in range(1, 4):
    e("v_xor_b32 v%d, %d, v22" % (vKr[s], 64 * s))
e("v_lshlrev_b32 v22, 4, v19")
e("v_lshl_add_u32 v%d, v20, 10, v22" % vVo)
e("v_lshlrev_b32 v22, 4, v20")
e("v_lshl_add_u32 v23, v19, 8, v22")
e("s_lshl_b32 s%d, s2, 19" % sBase)
e("s_lshl_b32 s%d, s%d, 13" % (sTmp, sW))
e("s_add_u32 s%d, s%d, s%d" % (sBase, sBase, sTmp))
e("s_add_u32 s%d, s%d, 4096" % (sA1, sBase))
e("s_add_u32 s%d, s%d, 65536" % (sB0, sBase))
e("s_add_u32 s%d, s%d, 69632" % (sB1, sBase))
e("s_mov_b32 s%d, s%d" % (sA0, sBase))
e("s_lshl_b32 s%d, s2, 13" % sTmp)
e("s_add_u32 s%d, s%d, 4096" % (sTmp2, sTmp))
e("s_mov_b32 s%d, %s" % (sC, f32hex(C)))
e("s_mov_b32 s%d, 0x05040100" % sSelLo)
e("s_mov_b32 s%d, 0x07060302" % sSelHi)
e("s_mov_b32 s%d, %s" % (sBig, f32hex(BIG)))
e("s_mov_b32 s%d, 0x80000000" % sOOB)
e("s_waitcnt lgkmcnt(0)")
if STAMP: e("s_mov_b32 s72, s66")
def mksrd(r, p, nbytes):
    e("s_mov_b32 s%d, s%d" % (r, p))
    e("s_and_b32 s%d, s%d, 0xffff" % (r + 1, p + 1))
    e("s_mov_b32 s%d, 0x%x" % (r + 2, nbytes))
    e("s_mov_b32 s%d, 0x00020000" % (r + 3))
mksrd(sQ, 4, 32 * 32 * 8 * 128 * 2)
mksrd(sK, 6, 32 * 8 * 2048 * 128 * 2)
mksrd(sV, 8, 32 * 8 * 2048 * 128 * 2)
for qb in range(2):
    for s in range(4):
        e("buffer_load_dwordx4 %s, v23, %s, s%d offen offset:%d" % (q(Q(qb, s)), srd(sQ), sTmp if qb == 0 else sTmp2, 64 * s))
mksrd(sKT, 10, 32 * 8 * 8 * 128 * 2)
mksrd(sVT, 12, 32 * 8 * 8 * 128 * 2)
mksrd(sMK, 14, 32 * 8 * 8 * 2)
mksrd(sO, 16, 32 * 32 * 8 * 128 * 2)
e("s_cmp_lg_u32 s%d, 0" % sW)
e("s_cbranch_scc1 L_notree_ld")
e("s_lshl_b32 s%d, s2, 11" % sTmp)
e("v_mov_b32 v22, s%d" % sOOB)
e("v_cmp_gt_u32 vcc, 8, v19")
e("s_nop 1")
e("v_cndmask_b32 v21, v22, v23, vcc")
for s in range(4):
    e("buffer_load_dwordx4 %s, v21, %s, s%d offen offset:%d" % (q(T(s)), srd(sKT), sTmp, 64 * s))
e("v_cmp_gt_u32 vcc, 2, v20")
e("s_nop 1")
e("v_cndmask_b32 v21, v22, v%d, vcc" % vVo)
for n in range(4):
    e("buffer_load_dwordx4 %s, v21, %s, s%d offen offset:%d" % (q(T(4 + n)), srd(sVT), sTmp, 256 * n))
e("v_and_b32 v21, 7, v19")
e("v_lshlrev_b32 v21, 4, v21")
e("v_lshl_add_u32 v21, v20, 3, v21")
e("v_cndmask_b32 v21, v22, v21, vcc")
e("s_lshr_b32 s%d, s2, 3" % sTmp)
e("s_lshl_b32 s%d, s%d, 7" % (sTmp, sTmp))
e("buffer_load_dwordx2 %s, v21, %s, s%d offen" % (d2(vt[0]), srd(sMK), sTmp))
lab("L_notree_ld")

def dmaK(h, s0, s1):
    e("s_add_u32 m0, s%d, %d" % (sLds, h * 8192))
    e("s_nop 0")
    for j in range(4):
        e("buffer_load_dwordx4 v%d, %s, s%d offen offset:%d%s lds" % (vKd[j], srd(sK), s0, 1024 * j, NTK))
    e("s_add_u32 m0, s%d, %d" % (sLds, h * 8192 + 4096))
    e("s_nop 0")
    for j in range(4):
        e("buffer_load_dwordx4 v%d, %s, s%d offen offset:%d%s lds" % (vKd[j], srd(sK), s1, 1024 * j, NTK))
def loadV(h, s0, s1):
    for n in range(8):
        e("buffer_load_dwordx4 %s, v%d, %s, s%d offen offset:%d%s" % (q(V(h, n)), vVo, srd(sV), s0 if n < 4 else s1, 256 * (n % 4), NTV))
dmaK(0, sA0, sA1); dmaK(1, sB0, sB1); loadV(0, sA0, sA1); loadV(1, sB0, sB1)

def xreduce(op, regs, tmps):
    for sw in ("v_permlane32_swap_b32", "v_permlane16_swap_b32"):
        for r, t in zip(regs, tmps): e("v_mov_b32 v%d, v%d" % (t, r))
        e("s_nop 1")
        for r, t in zip(regs, tmps): e("%s v%d, v%d" % (sw, r, t))
        e("s_nop 0")
        for r, t in zip(regs, tmps): e("%s v%d, v%d, v%d" % (op, r, r, t))

e("s_mov_b32 s%d, 0" % sIt)
e("s_cmp_lg_u32 s%d, 0" % sW)
e("s_cbranch_scc1 L_notree")
e("s_waitcnt vmcnt(32)")
for s in range(4):
    for qb in range(2):
        e("v_mfma_f32_16x16x32_bf16 %s, %s, %s, %s" % (q(S(0, 0, qb)), q(T(s)), q(Q(qb, s)), "0" if s == 0 else q(S(0, 0, qb))))
B = S(1, 0, 0)
e("v_lshlrev_b32 v%d, 16, v%d" % (B, vt[0]))
e("v_and_b32 v%d, 0xffff0000, v%d" % (B + 1, vt[0]))
e("v_lshlrev_b32 v%d, 16, v%d" % (B + 2, vt[1]))
e("v_and_b32 v%d, 0xffff0000, v%d" % (B + 3, vt[1]))
e("v_mov_b32 v%d, s%d" % (vt[2], sBig))
for r in range(4):
    e("v_fma_f32 v%d, v%d, v%d, -v%d" % (B + r, B + r, vt[2], vt[2]))
e("s_nop 3")
for qb in range(2):
    for r in range(4):
        e("v_add_f32 v%d, v%d, v%d" % (S(0, 0, qb) + r, S(0, 0, qb) + r, B + r))
for qb in range(2):
    s0 = S(0, 0, qb)
    e("v_max3_f32 v%d, v%d, v%d, v%d" % (vm[qb], s0, s0 + 1, s0 + 2))
    e("v_max_f32 v%d, v%d, v%d" % (vm[qb], vm[qb], s0 + 3))
xreduce("v_max_f32", vm, vt[0:2])
for qb in range(2):
    e("v_mul_f32 v%d, s%d, v%d" % (vmc[qb], sC, vm[qb]))
for qb in range(2):
    for r in range(4):
        x = S(0, 0, qb) + r
        e("v_fma_f32 v%d, v%d, s%d, -v%d" % (x, x, sC, vmc[qb]))
for qb in range(2):
    for r in range(4):
        x = S(0, 0, qb) + r
        e("v_exp_f32 v%d, v%d" % (x, x))
e("s_nop 0")
for qb in range(2):
    s0 = S(0, 0, qb)
    e("v_add_f32 v%d, v%d, v%d" % (vl[qb], s0, s0 + 1))
    e("v_add_f32 v%d, v%d, v%d" % (vt[qb], s0 + 2, s0 + 3))
    e("v_add_f32 v%d, v%d, v%d" % (vl[qb], vl[qb], vt[qb]))
    e("v_cvt_pk_bf16_f32 v%d, v%d, v%d" % (s0, s0, s0 + 1))
    e("v_cvt_pk_bf16_f32 v%d, v%d, v%d" % (s0 + 1, s0 + 2, s0 + 3))
TB = S(1, 0, 0)
for blk in range(8):
    j, ee = blk // 2, blk % 2
    for qq in range(2):
        e("v_perm_b32 v%d, v%d, v%d, s%d" % (TB + 2 * blk + qq, T(4 + 2 * qq + 1) + j, T(4 + 2 * qq) + j, sSelHi if ee else sSelLo))
e("s_nop 1")
for blk in range(8):
    for qb in range(2):
        e("v_mfma_f32_16x16x16_bf16 %s, %s, %s, 0" % (q(O(blk, qb)), d2(TB + 2 * blk), d2(S(0, 0, qb))))
e("s_branch L_loop")
lab("L_notree")
for r in range(64): e("v_mov_b32 v%d, 0" % (56 + r))
for qb in range(2):
    e("v_mov_b32 v%d, 0xff800000" % vm[qb])
    e("v_mov_b32 v%d, 0" % vl[qb])

lab("L_loop")
e("s_add_u32 s%d, s%d, 131072" % (sBase, sBase))
e("s_cmp_lt_u32 s%d, 3" % sIt)
e("s_cselect_b32 s%d, s%d, s%d" % (sA0, sBase, sOOB))
e("s_add_u32 s%d, s%d, 4096" % (sA1, sA0))
e("s_add_u32 s%d, s%d, 65536" % (sB0, sA0))
e("s_add_u32 s%d, s%d, 69632" % (sB1, sA0))
def qk(h, s0, s1):
    e("s_waitcnt vmcnt(24)")
    if STAMP and h == 0:
        e("s_cmp_lg_u32 s%d, 0" % sIt)
        e("s_cbranch_scc1 L_nostamp")
        stamp(1)
        lab("L_nostamp")
    for kb in range(2):
        for s in range(4):
            e("ds_read_b128 %s, v%d offset:%d" % (q(T(kb * 4 + s)), vKr[s], h * 8192 + kb * 4096))
    for kb in range(2):
        for s in range(4):
            e("s_waitcnt lgkmcnt(%d)" % (7 - kb * 4 - s))
            for qb in range(2):
                e("v_mfma_f32_16x16x32_bf16 %s, %s, %s, %s" % (q(S(h, kb, qb)), q(T(kb * 4 + s)), q(Q(qb, s)), "0" if s == 0 else q(S(h, kb, qb))))
    dmaK(h, s0, s1)
qk(0, sA0, sA1)
qk(1, sB0, sB1)
for qb in range(2):
    vals = [S(h, kb, qb) + r for h in range(2) for kb in range(2) for r in range(4)]
    e("v_max3_f32 v%d, v%d, v%d, v%d" % (vt[qb], vals[0], vals[1], vm[qb]))
    for k in range(2, 16, 2):
        e("v_max3_f32 v%d, v%d, v%d, v%d" % (vt[qb], vals[k], vals[k + 1], vt[qb]))
xreduce("v_max_f32", vt[0:2], vt[2:4])
for qb in range(2):
    e("v_sub_f32 v%d, v%d, v%d" % (val[qb], vm[qb], vt[qb]))
    e("v_mul_f32 v%d, s%d, v%d" % (vmc[qb], sC, vt[qb]))
    e("v_mul_f32 v%d, s%d, v%d" % (val[qb], sC, val[qb]))
    e("v_mov_b32 v%d, v%d" % (vm[qb], vt[qb]))
for qb in range(2):
    e("v_exp_f32 v%d, v%d" % (val[qb], val[qb]))
for h in range(2):
    for kb in range(2):
        for qb in range(2):
            for r in range(4):
                x = S(h, kb, qb) + r
                e("v_fma_f32 v%d, v%d, s%d, -v%d" % (x, x, sC, vmc[qb]))
for h in range(2):
    for kb in range(2):
        for qb in range(2):
            for r in range(4):
                x = S(h, kb, qb) + r
                e("v_exp_f32 v%d, v%d" % (x, x))
for blk in range(8):
    for qb in range(2):
        for hh in range(2):
            o = O(blk, qb) + 2 * hh
            e("v_pk_mul_f32 %s, %s, %s op_sel:[0,%d] op_sel_hi:[1,%d]" % (d2(o), d2(o), d2(val[0]), qb, qb))
for qb in range(2):
    vals = [S(h, kb, qb) + r for h in range(2) for kb in range(2) for r in range(4)]
    e("v_add_f32 v%d, v%d, v%d" % (vt[qb], vals[0], vals[1]))
    e("v_add_f32 v%d, v%d, v%d" % (vt[2 + qb], vals[2], vals[3]))
    for k in range(4, 16, 2):
        e("v_add_f32 v%d, v%d, v%d" % (vt[qb], vt[qb], vals[k]))
        e("v_add_f32 v%d, v%d, v%d" % (vt[2 + qb], vt[2 + qb], vals[k + 1]))
    e("v_add_f32 v%d, v%d, v%d" % (vt[qb], vt[qb], vt[2 + qb]))
    e("v_fma_f32 v%d, v%d, v%d, v%d" % (vl[qb], vl[qb], val[qb], vt[qb]))
for h in range(2):
    for qb in range(2):
        a, b = S(h, 0, qb), S(h, 1, qb)
        e("v_cvt_pk_bf16_f32 v%d, v%d, v%d" % (a, a, a + 1))
        e("v_cvt_pk_bf16_f32 v%d, v%d, v%d" % (a + 1, a + 2, a + 3))
        e("v_cvt_pk_bf16_f32 v%d, v%d, v%d" % (a + 2, b, b + 1))
        e("v_cvt_pk_bf16_f32 v%d, v%d, v%d" % (a + 3, b + 2, b + 3))
def pv(h, s0, s1):
    e("s_waitcnt vmcnt(24)")
    def perms(blk):
        j, ee = blk // 2, blk % 2
        for qq in range(4):
            e("v_perm_b32 v%d, v%d, v%d, s%d" % (T(blk) + qq, V(h, 2 * qq + 1) + j, V(h, 2 * qq) + j, sSelHi if ee else sSelLo))
    perms(0)
    for blk in range(8):
        if blk < 7: perms(blk + 1)
        else: loadV(h, s0, s1)
        for qb in range(2):
            e("v_mfma_f32_16x16x32_bf16 %s, %s, %s, %s" % (q(O(blk, qb)), q(T(blk)), q(S(h, 0, qb)), q(O(blk, qb))))
pv(0, sA0, sA1)
pv(1, sB0, sB1)
e("s_add_u32 s%d, s%d, 1" % (sIt, sIt))
e("s_cmp_lt_u32 s%d, 4" % sIt)
e("s_cbranch_scc1 L_loop")

stamp(2)
xreduce("v_add_f32", vl, vt[0:2])
e("v_lshlrev_b32 v%d, 4, v0" % vt[2])
e("v_add_u32 v%d, s%d, v%d" % (vt[3], sLds, vt[2]))
e("s_lshl_b32 s%d, s%d, 10" % (sTmp, sW))
e("s_add_u32 s%d, s%d, 131072" % (sTmp, sTmp))
e("v_add_u32 v%d, s%d, v%d" % (vt[4], sTmp, vt[2]))
e("v_mov_b32 v%d, v%d" % (T(0), vm[0]))
e("v_mov_b32 v%d, v%d" % (T(0) + 1, vl[0]))
e("v_mov_b32 v%d, v%d" % (T(0) + 2, vm[1]))
e("v_mov_b32 v%d, v%d" % (T(0) + 3, vl[1]))
e("s_waitcnt vmcnt(0)")
e("ds_write_b128 v%d, %s" % (vt[4], q(T(0))))
for qb in range(2):
    for r in range(4):
        u = qb * 4 + r
        for blk in range(8):
            e("v_mov_b32 v%d, v%d" % (120 + u * 8 + blk, O(blk, qb) + r))
        for hh in range(2):
            e("ds_write_b128 v%d, %s offset:%d" % (vt[3], q(120 + u * 8 + hh * 4), u * 2048 + hh * 1024))
e("s_lshr_b32 s%d, s%d, 2" % (sTmp, sW))
e("s_lshl_b32 s%d, s%d, 3" % (sTmp2, sTmp))
e("s_add_u32 s%d, s%d, 131072" % (sTmp2, sTmp2))
e("v_add_u32 v%d, s%d, v%d" % (vt[4], sTmp2, vt[2]))
e("s_lshl_b32 s%d, s%d, 11" % (sTmp2, sW))
e("v_add_u32 v%d, s%d, v%d" % (vt[3], sTmp2, vt[2]))
e("v_add_u32 v%d, 0x10000, v%d" % (vt[5], vt[3]))
e("v_and_b32 v1, 15, v0")
e("v_lshrrev_b32 v2, 4, v0")
e("v_lshlrev_b32 v1, 8, v1")
e("v_lshl_add_u32 v1, v2, 6, v1")
e("s_lshl_b32 s%d, s%d, 12" % (sTmp, sTmp))
e("s_and_b32 s%d, s%d, 3" % (sTmp2, sW))
e("s_lshl_b32 s%d, s%d, 4" % (sTmp2, sTmp2))
e("s_add_u32 s%d, s%d, s%d" % (sTmp, sTmp, sTmp2))
e("s_lshl_b32 s%d, s2, 13" % sTmp2)
e("s_add_u32 s%d, s%d, s%d" % (sTmp, sTmp, sTmp2))
e("s_waitcnt lgkmcnt(0)")
e("s_barrier")
SM = 24
for w in range(8):
    e("ds_read_b64 %s, v%d offset:%d" % (d2(SM + 2 * w), vt[4], w * 1024))
OR = 56
for w in range(8):
    for hh in range(2):
        e("ds_read_b128 %s, v%d offset:%d" % (q(OR + w * 8 + hh * 4), vt[3] if w < 4 else vt[5], (w % 4) * 16384 + hh * 1024))
e("s_waitcnt lgkmcnt(15)")
e("v_max3_f32 v2, v%d, v%d, v%d" % (SM, SM + 2, SM + 4))
e("v_max3_f32 v2, v2, v%d, v%d" % (SM + 6, SM + 8))
e("v_max3_f32 v2, v2, v%d, v%d" % (SM + 10, SM + 12))
e("v_max_f32 v2, v2, v%d" % (SM + 14))
for w in range(8):
    e("v_sub_f32 v%d, v%d, v2" % (SM + 2 * w, SM + 2 * w))
for w in range(8):
    e("v_mul_f32 v%d, s%d, v%d" % (SM + 2 * w, sC, SM + 2 * w))
for w in range(8):
    e("v_exp_f32 v%d, v%d" % (SM + 2 * w, SM + 2 * w))
e("s_nop 0")
e("v_mul_f32 v3, v%d, v%d" % (SM, SM + 1))
for w in range(1, 8):
    e("v_fmac_f32 v3, v%d, v%d" % (SM + 2 * w, SM + 2 * w + 1))
e("v_rcp_f32 v3, v3")
for w in range(8):
    e("s_waitcnt lgkmcnt(%d)" % (14 - 2 * w))
    for k in range(8):
        if w == 0: e("v_mul_f32 v%d, v%d, v%d" % (40 + k, SM, OR + k))
        else: e("v_fmac_f32 v%d, v%d, v%d" % (40 + k, SM + 2 * w, OR + w * 8 + k))
for k in range(8):
    e("v_mul_f32 v%d, v%d, v3" % (40 + k, 40 + k))
for k in range(4):
    e("v_cvt_pk_bf16_f32 v%d, v%d, v%d" % (48 + k, 40 + 2 * k, 41 + 2 * k))
e("buffer_store_dwordx4 v[48:51], v1, %s, s%d offen" % (srd(sO), sTmp))
if STAMP:
    e("s_waitcnt vmcnt(0)")
    stamp(3)
    mksrd(76, 68, 256)
    e("s_mov_b64 exec, 1")
    e("v_mov_b32 v1, 0")
    for k in range(4):
        e("v_mov_b32 v2, s%d" % (72 + k))
        e("v_not_b32 v3, v2")
        e("buffer_atomic_umax v2, v1, s[76:79], 0 offen offset:%d" % (8 * k))
        e("buffer_atomic_umax v3, v1, s[76:79], 0 offen offset:%d" % (8 * k + 4))
        e("s_waitcnt vmcnt(0)")
if TWICE:
    e("s_waitcnt vmcnt(0)")
    e("s_barrier")
    e("s_add_u32 s64, s64, 1")
    e("s_cmp_lt_u32 s64, 2")
    e("s_cbranch_scc1 L_restart")
lab("L_end")
e("s_endpgm")
out.append('.section .rodata,"a"')
out.append(".p2align 6")
out.append(".amdhsa_kernel %s_kernel" % NAME)
out.append("  .amdhsa_next_free_vgpr 248")
out.append("  .amdhsa_next_free_sgpr 96")
out.append("  .amdhsa_accum_offset 248")
out.append("  .amdhsa_group_segment_fixed_size 0")
out.append("  .amdhsa_kernarg_size 72")
out.append("  .amdhsa_user_sgpr_count 2")
out.append("  .amdhsa_user_sgpr_kernarg_segment_ptr 1")
out.append("  .amdhsa_system_sgpr_workgroup_id_x 1")
out.append(".end_amdhsa_kernel")
print("\n".join(out))
```

```python
import struct, sys, math
NAME = "standalone__tree_speculative_verify_tree_attention_over_candidate_token_tree__sampling"
def f32hex(x): return "0x%08x" % struct.unpack("<I", struct.pack("<f", x))[0]
SCALE = 128 ** -0.5
C = SCALE * math.log2(math.e)
BIG = 1e9 / SCALE

NTK = ""; NTV = ""; TWICE = "twice" in sys.argv; STAMP = "stamp" in sys.argv
for a in sys.argv[1:]:
    if a.startswith("pol="): NTK = NTV = " " + a[4:].replace("+", " ")
    if a.startswith("polK="): NTK = " " + a[5:].replace("+", " ")
    if a.startswith("polV="): NTV = " " + a[5:].replace("+", " ")

out = []
def e(s): out.append("    " + s)
def lab(s): out.append(s + ":")
def q(r): return "v[%d:%d]" % (r, r + 3)
def d2(r): return "v[%d:%d]" % (r, r + 1)

vKd = [1, 2, 3, 4]; vKr = [5, 6, 7, 8]; vVo = 9
vm = [10, 11]; vl = [12, 13]; val = [14, 15]; vmc = [16, 17]
vt = [18, 19, 20, 21, 22, 23]
def Q(qb, s): return 24 + (qb * 4 + s) * 4
def O(blk, qb): return 56 + (blk * 2 + qb) * 4
def V(h, n): return 120 + h * 32 + n * 4
def S(h, kb, qb): return 184 + ((h * 2 + kb) * 2 + qb) * 4
def T(i): return 216 + 4 * i
sK, sV, sQ, sKT, sVT, sMK, sO = 20, 24, 28, 32, 36, 40, 44
def srd(r): return "s[%d:%d]" % (r, r + 3)
sW = 48; sLds = 49; sIt = 50; sA0, sA1, sB0, sB1 = 52, 53, 54, 55
sC = 56; sSelLo = 57; sSelHi = 58; sBig = 59; sTmp = 60; sTmp2 = 61; sBase = 62; sOOB = 63

hdr = open("cdna_kernels/%s.s.ref" % NAME).read().split("\n")
for l in hdr:
    if l.startswith("; @launch"): break
    out.append(l)
LDS_BYTES = 131072 + 8192
out.append("; @launch grid=(256,1,1) block=(512,1,1) lds=%d" % LDS_BYTES)
out.append('.amdgcn_target "amdgcn-amd-amdhsa--gfx950"')
out.append(".text")
out.append(".globl %s_kernel" % NAME)
out.append(".p2align 8")
out.append(".type %s_kernel,@function" % NAME)
lab("%s_kernel" % NAME)
e("s_cmp_ge_u32 s2, 256")
e("s_cbranch_scc1 L_end")
e("s_load_dwordx8 s[4:11], s[0:1], 0")
e("s_load_dwordx4 s[12:15], s[0:1], 32")
e("s_load_dwordx2 s[16:17], s[0:1], 48")
def stamp(k):
    if STAMP:
        e("s_memrealtime s[66:67]")
        e("s_waitcnt lgkmcnt(0)")
        e("s_mov_b32 s%d, s66" % (72 + k))
if STAMP:
    e("s_load_dwordx4 s[68:71], s[0:1], 56")
    e("s_memrealtime s[66:67]")
e("v_lshrrev_b32 v18, 6, v0")
e("v_and_b32 v0, 63, v0")
e("v_readfirstlane_b32 s%d, v18" % sW)
if TWICE:
    e("s_mov_b32 s64, 0")
    lab("L_restart")
e("v_and_b32 v19, 15, v0")
e("v_lshrrev_b32 v20, 4, v0")
e("v_xor_b32 v21, v19, v20")
e("v_lshlrev_b32 v21, 4, v21")
e("v_lshl_add_u32 v22, v20, 8, v21")
e("v_mov_b32 v%d, v22" % vKd[0])
for j in range(1, 4):
    e("v_xor_b32 v%d, %d, v22" % (vKd[j], 64 * j))
e("s_lshl_b32 s%d, s%d, 14" % (sLds, sW))
e("v_lshl_add_u32 v22, v19, 8, v21")
e("v_add_u32 v22, s%d, v22" % sLds)
e("v_mov_b32 v%d, v22" % vKr[0])
for s in range(1, 4):
    e("v_xor_b32 v%d, %d, v22" % (vKr[s], 64 * s))
e("v_lshlrev_b32 v22, 4, v19")
e("v_lshl_add_u32 v%d, v20, 10, v22" % vVo)
e("v_lshlrev_b32 v22, 4, v20")
e("v_lshl_add_u32 v23, v19, 8, v22")
e("s_lshl_b32 s%d, s2, 19" % sBase)
e("s_lshl_b32 s%d, s%d, 13" % (sTmp, sW))
e("s_add_u32 s%d, s%d, s%d" % (sBase, sBase, sTmp))
e("s_add_u32 s%d, s%d, 4096" % (sA1, sBase))
e("s_add_u32 s%d, s%d, 65536" % (sB0, sBase))
e("s_add_u32 s%d, s%d, 69632" % (sB1, sBase))
e("s_mov_b32 s%d, s%d" % (sA0, sBase))
e("s_lshl_b32 s%d, s2, 13" % sTmp)
e("s_add_u32 s%d, s%d, 4096" % (sTmp2, sTmp))
e("s_mov_b32 s%d, %s" % (sC, f32hex(C)))
e("s_mov_b32 s%d, 0x05040100" % sSelLo)
e("s_mov_b32 s%d, 0x07060302" % sSelHi)
e("s_mov_b32 s%d, %s" % (sBig, f32hex(BIG)))
e("s_mov_b32 s%d, 0x80000000" % sOOB)
e("s_waitcnt lgkmcnt(0)")
if STAMP: e("s_mov_b32 s72, s66")
def mksrd(r, p, nbytes):
    e("s_mov_b32 s%d, s%d" % (r, p))
    e("s_and_b32 s%d, s%d, 0xffff" % (r + 1, p + 1))
    e("s_mov_b32 s%d, 0x%x" % (r + 2, nbytes))
    e("s_mov_b32 s%d, 0x00020000" % (r + 3))
mksrd(sQ, 4, 32 * 32 * 8 * 128 * 2)
mksrd(sK, 6, 32 * 8 * 2048 * 128 * 2)
mksrd(sV, 8, 32 * 8 * 2048 * 128 * 2)
for qb in range(2):
    for s in range(4):
        e("buffer_load_dwordx4 %s, v23, %s, s%d offen offset:%d" % (q(Q(qb, s)), srd(sQ), sTmp if qb == 0 else sTmp2, 64 * s))
mksrd(sKT, 10, 32 * 8 * 8 * 128 * 2)
mksrd(sVT, 12, 32 * 8 * 8 * 128 * 2)
mksrd(sMK, 14, 32 * 8 * 8 * 2)
mksrd(sO, 16, 32 * 32 * 8 * 128 * 2)
e("s_cmp_lg_u32 s%d, 0" % sW)
e("s_cbranch_scc1 L_notree_ld")
e("s_lshl_b32 s%d, s2, 11" % sTmp)
e("v_mov_b32 v22, s%d" % sOOB)
e("v_cmp_gt_u32 vcc, 8, v19")
e("s_nop 1")
e("v_cndmask_b32 v21, v22, v23, vcc")
for s in range(4):
    e("buffer_load_dwordx4 %s, v21, %s, s%d offen offset:%d" % (q(T(s)), srd(sKT), sTmp, 64 * s))
e("v_cmp_gt_u32 vcc, 2, v20")
e("s_nop 1")
e("v_cndmask_b32 v21, v22, v%d, vcc" % vVo)
for n in range(4):
    e("buffer_load_dwordx4 %s, v21, %s, s%d offen offset:%d" % (q(T(4 + n)), srd(sVT), sTmp, 256 * n))
e("v_and_b32 v21, 7, v19")
e("v_lshlrev_b32 v21, 4, v21")
e("v_lshl_add_u32 v21, v20, 3, v21")
e("v_cndmask_b32 v21, v22, v21, vcc")
e("s_lshr_b32 s%d, s2, 3" % sTmp)
e("s_lshl_b32 s%d, s%d, 7" % (sTmp, sTmp))
e("buffer_load_dwordx2 %s, v21, %s, s%d offen" % (d2(vt[0]), srd(sMK), sTmp))
lab("L_notree_ld")

def dmaK(h, s0, s1):
    e("s_add_u32 m0, s%d, %d" % (sLds, h * 8192))
    e("s_nop 0")
    for j in range(4):
        e("buffer_load_dwordx4 v%d, %s, s%d offen offset:%d%s lds" % (vKd[j], srd(sK), s0, 1024 * j, NTK))
    e("s_add_u32 m0, s%d, %d" % (sLds, h * 8192 + 4096))
    e("s_nop 0")
    for j in range(4):
        e("buffer_load_dwordx4 v%d, %s, s%d offen offset:%d%s lds" % (vKd[j], srd(sK), s1, 1024 * j, NTK))
def loadV(h, s0, s1):
    for n in range(8):
        e("buffer_load_dwordx4 %s, v%d, %s, s%d offen offset:%d%s" % (q(V(h, n)), vVo, srd(sV), s0 if n < 4 else s1, 256 * (n % 4), NTV))
dmaK(0, sA0, sA1); dmaK(1, sB0, sB1); loadV(0, sA0, sA1); loadV(1, sB0, sB1)

def xreduce(op, regs, tmps):
    for sw in ("v_permlane32_swap_b32", "v_permlane16_swap_b32"):
        for r, t in zip(regs, tmps): e("v_mov_b32 v%d, v%d" % (t, r))
        e("s_nop 1")
        for r, t in zip(regs, tmps): e("%s v%d, v%d" % (sw, r, t))
        e("s_nop 0")
        for r, t in zip(regs, tmps): e("%s v%d, v%d, v%d" % (op, r, r, t))

e("s_mov_b32 s%d, 0" % sIt)
e("s_cmp_lg_u32 s%d, 0" % sW)
e("s_cbranch_scc1 L_notree")
e("s_waitcnt vmcnt(32)")
for s in range(4):
    for qb in range(2):
        e("v_mfma_f32_16x16x32_bf16 %s, %s, %s, %s" % (q(S(0, 0, qb)), q(T(s)), q(Q(qb, s)), "0" if s == 0 else q(S(0, 0, qb))))
B = S(1, 0, 0)
e("v_lshlrev_b32 v%d, 16, v%d" % (B, vt[0]))
e("v_and_b32 v%d, 0xffff0000, v%d" % (B + 1, vt[0]))
e("v_lshlrev_b32 v%d, 16, v%d" % (B + 2, vt[1]))
e("v_and_b32 v%d, 0xffff0000, v%d" % (B + 3, vt[1]))
e("v_mov_b32 v%d, s%d" % (vt[2], sBig))
for r in range(4):
    e("v_fma_f32 v%d, v%d, v%d, -v%d" % (B + r, B + r, vt[2], vt[2]))
e("s_nop 3")
for qb in range(2):
    for r in range(4):
        e("v_add_f32 v%d, v%d, v%d" % (S(0, 0, qb) + r, S(0, 0, qb) + r, B + r))
for qb in range(2):
    s0 = S(0, 0, qb)
    e("v_max3_f32 v%d, v%d, v%d, v%d" % (vm[qb], s0, s0 + 1, s0 + 2))
    e("v_max_f32 v%d, v%d, v%d" % (vm[qb], vm[qb], s0 + 3))
xreduce("v_max_f32", vm, vt[0:2])
for qb in range(2):
    e("v_mul_f32 v%d, s%d, v%d" % (vmc[qb], sC, vm[qb]))
for qb in range(2):
    for r in range(4):
        x = S(0, 0, qb) + r
        e("v_fma_f32 v%d, v%d, s%d, -v%d" % (x, x, sC, vmc[qb]))
for qb in range(2):
    for r in range(4):
        x = S(0, 0, qb) + r
        e("v_exp_f32 v%d, v%d" % (x, x))
e("s_nop 0")
for qb in range(2):
    s0 = S(0, 0, qb)
    e("v_add_f32 v%d, v%d, v%d" % (vl[qb], s0, s0 + 1))
    e("v_add_f32 v%d, v%d, v%d" % (vt[qb], s0 + 2, s0 + 3))
    e("v_add_f32 v%d, v%d, v%d" % (vl[qb], vl[qb], vt[qb]))
    e("v_cvt_pk_bf16_f32 v%d, v%d, v%d" % (s0, s0, s0 + 1))
    e("v_cvt_pk_bf16_f32 v%d, v%d, v%d" % (s0 + 1, s0 + 2, s0 + 3))
TB = S(1, 0, 0)
for blk in range(8):
    j, ee = blk // 2, blk % 2
    for qq in range(2):
        e("v_perm_b32 v%d, v%d, v%d, s%d" % (TB + 2 * blk + qq, T(4 + 2 * qq + 1) + j, T(4 + 2 * qq) + j, sSelHi if ee else sSelLo))
e("s_nop 1")
for blk in range(8):
    for qb in range(2):
        e("v_mfma_f32_16x16x16_bf16 %s, %s, %s, 0" % (q(O(blk, qb)), d2(TB + 2 * blk), d2(S(0, 0, qb))))
e("s_branch L_loop")
lab("L_notree")
for r in range(64): e("v_mov_b32 v%d, 0" % (56 + r))
for qb in range(2):
    e("v_mov_b32 v%d, 0xff800000" % vm[qb])
    e("v_mov_b32 v%d, 0" % vl[qb])

lab("L_loop")
e("s_add_u32 s%d, s%d, 131072" % (sBase, sBase))
e("s_cmp_lt_u32 s%d, 3" % sIt)
e("s_cselect_b32 s%d, s%d, s%d" % (sA0, sBase, sOOB))
e("s_add_u32 s%d, s%d, 4096" % (sA1, sA0))
e("s_add_u32 s%d, s%d, 65536" % (sB0, sA0))
e("s_add_u32 s%d, s%d, 69632" % (sB1, sA0))
def qk(h, s0, s1):
    e("s_waitcnt vmcnt(24)")
    if STAMP and h == 0:
        e("s_cmp_lg_u32 s%d, 0" % sIt)
        e("s_cbranch_scc1 L_nostamp")
        stamp(1)
        lab("L_nostamp")
    for kb in range(2):
        for s in range(4):
            e("ds_read_b128 %s, v%d offset:%d" % (q(T(kb * 4 + s)), vKr[s], h * 8192 + kb * 4096))
    for kb in range(2):
        for s in range(4):
            e("s_waitcnt lgkmcnt(%d)" % (7 - kb * 4 - s))
            for qb in range(2):
                e("v_mfma_f32_16x16x32_bf16 %s, %s, %s, %s" % (q(S(h, kb, qb)), q(T(kb * 4 + s)), q(Q(qb, s)), "0" if s == 0 else q(S(h, kb, qb))))
    dmaK(h, s0, s1)
qk(0, sA0, sA1)
qk(1, sB0, sB1)
for qb in range(2):
    vals = [S(h, kb, qb) + r for h in range(2) for kb in range(2) for r in range(4)]
    e("v_max3_f32 v%d, v%d, v%d, v%d" % (vt[qb], vals[0], vals[1], vm[qb]))
    for k in range(2, 16, 2):
        e("v_max3_f32 v%d, v%d, v%d, v%d" % (vt[qb], vals[k], vals[k + 1], vt[qb]))
xreduce("v_max_f32", vt[0:2], vt[2:4])
for qb in range(2):
    e("v_sub_f32 v%d, v%d, v%d" % (val[qb], vm[qb], vt[qb]))
    e("v_mul_f32 v%d, s%d, v%d" % (vmc[qb], sC, vt[qb]))
    e("v_mul_f32 v%d, s%d, v%d" % (val[qb], sC, val[qb]))
    e("v_mov_b32 v%d, v%d" % (vm[qb], vt[qb]))
for qb in range(2):
    e("v_exp_f32 v%d, v%d" % (val[qb], val[qb]))
for h in range(2):
    for kb in range(2):
        for qb in range(2):
            for r in range(4):
                x = S(h, kb, qb) + r
                e("v_fma_f32 v%d, v%d, s%d, -v%d" % (x, x, sC, vmc[qb]))
for h in range(2):
    for kb in range(2):
        for qb in range(2):
            for r in range(4):
                x = S(h, kb, qb) + r
                e("v_exp_f32 v%d, v%d" % (x, x))
for blk in range(8):
    for qb in range(2):
        for hh in range(2):
            o = O(blk, qb) + 2 * hh
            e("v_pk_mul_f32 %s, %s, %s op_sel:[0,%d] op_sel_hi:[1,%d]" % (d2(o), d2(o), d2(val[0]), qb, qb))
for qb in range(2):
    vals = [S(h, kb, qb) + r for h in range(2) for kb in range(2) for r in range(4)]
    e("v_add_f32 v%d, v%d, v%d" % (vt[qb], vals[0], vals[1]))
    e("v_add_f32 v%d, v%d, v%d" % (vt[2 + qb], vals[2], vals[3]))
    for k in range(4, 16, 2):
        e("v_add_f32 v%d, v%d, v%d" % (vt[qb], vt[qb], vals[k]))
        e("v_add_f32 v%d, v%d, v%d" % (vt[2 + qb], vt[2 + qb], vals[k + 1]))
    e("v_add_f32 v%d, v%d, v%d" % (vt[qb], vt[qb], vt[2 + qb]))
    e("v_fma_f32 v%d, v%d, v%d, v%d" % (vl[qb], vl[qb], val[qb], vt[qb]))
for h in range(2):
    for qb in range(2):
        a, b = S(h, 0, qb), S(h, 1, qb)
        e("v_cvt_pk_bf16_f32 v%d, v%d, v%d" % (a, a, a + 1))
        e("v_cvt_pk_bf16_f32 v%d, v%d, v%d" % (a + 1, a + 2, a + 3))
        e("v_cvt_pk_bf16_f32 v%d, v%d, v%d" % (a + 2, b, b + 1))
        e("v_cvt_pk_bf16_f32 v%d, v%d, v%d" % (a + 3, b + 2, b + 3))
def pv(h, s0, s1):
    e("s_waitcnt vmcnt(24)")
    def perms(blk):
        j, ee = blk // 2, blk % 2
        for qq in range(4):
            e("v_perm_b32 v%d, v%d, v%d, s%d" % (T(blk) + qq, V(h, 2 * qq + 1) + j, V(h, 2 * qq) + j, sSelHi if ee else sSelLo))
    perms(0)
    for blk in range(8):
        if blk < 7: perms(blk + 1)
        else: loadV(h, s0, s1)
        for qb in range(2):
            e("v_mfma_f32_16x16x32_bf16 %s, %s, %s, %s" % (q(O(blk, qb)), q(T(blk)), q(S(h, 0, qb)), q(O(blk, qb))))
pv(0, sA0, sA1)
pv(1, sB0, sB1)
e("s_add_u32 s%d, s%d, 1" % (sIt, sIt))
e("s_cmp_lt_u32 s%d, 4" % sIt)
e("s_cbranch_scc1 L_loop")

stamp(2)
xreduce("v_add_f32", vl, vt[0:2])
e("v_lshlrev_b32 v%d, 4, v0" % vt[2])
e("v_add_u32 v%d, s%d, v%d" % (vt[3], sLds, vt[2]))
e("s_lshl_b32 s%d, s%d, 10" % (sTmp, sW))
e("s_add_u32 s%d, s%d, 131072" % (sTmp, sTmp))
e("v_add_u32 v%d, s%d, v%d" % (vt[4], sTmp, vt[2]))
e("v_mov_b32 v%d, v%d" % (T(0), vm[0]))
e("v_mov_b32 v%d, v%d" % (T(0) + 1, vl[0]))
e("v_mov_b32 v%d, v%d" % (T(0) + 2, vm[1]))
e("v_mov_b32 v%d, v%d" % (T(0) + 3, vl[1]))
e("s_waitcnt vmcnt(0)")
e("ds_write_b128 v%d, %s" % (vt[4], q(T(0))))
for qb in range(2):
    for r in range(4):
        u = qb * 4 + r
        for blk in range(8):
            e("v_mov_b32 v%d, v%d" % (120 + u * 8 + blk, O(blk, qb) + r))
        for hh in range(2):
            e("ds_write_b128 v%d, %s offset:%d" % (vt[3], q(120 + u * 8 + hh * 4), u * 2048 + hh * 1024))
e("s_lshr_b32 s%d, s%d, 2" % (sTmp, sW))
e("s_lshl_b32 s%d, s%d, 3" % (sTmp2, sTmp))
e("s_add_u32 s%d, s%d, 131072" % (sTmp2, sTmp2))
e("v_add_u32 v%d, s%d, v%d" % (vt[4], sTmp2, vt[2]))
e("s_lshl_b32 s%d, s%d, 11" % (sTmp2, sW))
e("v_add_u32 v%d, s%d, v%d" % (vt[3], sTmp2, vt[2]))
e("v_add_u32 v%d, 0x10000, v%d" % (vt[5], vt[3]))
e("v_and_b32 v1, 15, v0")
e("v_lshrrev_b32 v2, 4, v0")
e("v_lshlrev_b32 v1, 8, v1")
e("v_lshl_add_u32 v1, v2, 6, v1")
e("s_lshl_b32 s%d, s%d, 12" % (sTmp, sTmp))
e("s_and_b32 s%d, s%d, 3" % (sTmp2, sW))
e("s_lshl_b32 s%d, s%d, 4" % (sTmp2, sTmp2))
e("s_add_u32 s%d, s%d, s%d" % (sTmp, sTmp, sTmp2))
e("s_lshl_b32 s%d, s2, 13" % sTmp2)
e("s_add_u32 s%d, s%d, s%d" % (sTmp, sTmp, sTmp2))
e("s_waitcnt lgkmcnt(0)")
e("s_barrier")
SM = 24
for w in range(8):
    e("ds_read_b64 %s, v%d offset:%d" % (d2(SM + 2 * w), vt[4], w * 1024))
OR = 56
for w in range(8):
    for hh in range(2):
        e("ds_read_b128 %s, v%d offset:%d" % (q(OR + w * 8 + hh * 4), vt[3] if w < 4 else vt[5], (w % 4) * 16384 + hh * 1024))
e("s_waitcnt lgkmcnt(15)")
e("v_max3_f32 v2, v%d, v%d, v%d" % (SM, SM + 2, SM + 4))
e("v_max3_f32 v2, v2, v%d, v%d" % (SM + 6, SM + 8))
e("v_max3_f32 v2, v2, v%d, v%d" % (SM + 10, SM + 12))
e("v_max_f32 v2, v2, v%d" % (SM + 14))
for w in range(8):
    e("v_sub_f32 v%d, v%d, v2" % (SM + 2 * w, SM + 2 * w))
for w in range(8):
    e("v_mul_f32 v%d, s%d, v%d" % (SM + 2 * w, sC, SM + 2 * w))
for w in range(8):
    e("v_exp_f32 v%d, v%d" % (SM + 2 * w, SM + 2 * w))
e("s_nop 0")
e("v_mul_f32 v3, v%d, v%d" % (SM, SM + 1))
for w in range(1, 8):
    e("v_fmac_f32 v3, v%d, v%d" % (SM + 2 * w, SM + 2 * w + 1))
e("v_rcp_f32 v3, v3")
for w in range(8):
    e("s_waitcnt lgkmcnt(%d)" % (14 - 2 * w))
    for k in range(8):
        if w == 0: e("v_mul_f32 v%d, v%d, v%d" % (40 + k, SM, OR + k))
        else: e("v_fmac_f32 v%d, v%d, v%d" % (40 + k, SM + 2 * w, OR + w * 8 + k))
for k in range(8):
    e("v_mul_f32 v%d, v%d, v3" % (40 + k, 40 + k))
for k in range(4):
    e("v_cvt_pk_bf16_f32 v%d, v%d, v%d" % (48 + k, 40 + 2 * k, 41 + 2 * k))
e("buffer_store_dwordx4 v[48:51], v1, %s, s%d offen" % (srd(sO), sTmp))
if STAMP:
    e("s_waitcnt vmcnt(0)")
    stamp(3)
    mksrd(76, 68, 256)
    mksrd(80, 70, 1 << 20)
    e("s_mov_b64 exec, 1")
    e("s_lshl_b32 s84, s2, 3")
    e("s_add_u32 s84, s84, s%d" % sW)
    e("s_lshl_b32 s84, s84, 4")
    e("v_mov_b32 v1, 0")
    for k in range(4): e("v_mov_b32 v%d, s%d" % (4 + k, 72 + k))
    e("buffer_store_dwordx4 v[4:7], v1, s[80:83], s84 offen")
    e("s_cmp_lg_u32 s%d, 7" % sW)
    e("s_cbranch_scc1 L_end")
    for k in (0, 3):
        e("v_mov_b32 v2, s%d" % (72 + k))
        e("v_not_b32 v3, v2")
        e("buffer_atomic_umax v2, v1, s[76:79], 0 offen offset:%d" % (8 * k))
        e("buffer_atomic_umax v3, v1, s[76:79], 0 offen offset:%d" % (8 * k + 4))
        e("s_waitcnt vmcnt(0)")
if TWICE:
    e("s_waitcnt vmcnt(0)")
    e("s_barrier")
    e("s_add_u32 s64, s64, 1")
    e("s_cmp_lt_u32 s64, 2")
    e("s_cbranch_scc1 L_restart")
lab("L_end")
e("s_endpgm")
out.append('.section .rodata,"a"')
out.append(".p2align 6")
out.append(".amdhsa_kernel %s_kernel" % NAME)
out.append("  .amdhsa_next_free_vgpr 248")
out.append("  .amdhsa_next_free_sgpr 96")
out.append("  .amdhsa_accum_offset 248")
out.append("  .amdhsa_group_segment_fixed_size 0")
out.append("  .amdhsa_kernarg_size 72")
out.append("  .amdhsa_user_sgpr_count 2")
out.append("  .amdhsa_user_sgpr_kernarg_segment_ptr 1")
out.append("  .amdhsa_system_sgpr_workgroup_id_x 1")
out.append(".end_amdhsa_kernel")
print("\n".join(out))
```

```python
import struct, sys, math
NAME = "standalone__tree_speculative_verify_tree_attention_over_candidate_token_tree__sampling"
def f32hex(x): return "0x%08x" % struct.unpack("<I", struct.pack("<f", x))[0]
SCALE = 128 ** -0.5
C = SCALE * math.log2(math.e)
BIG = 1e9 / SCALE
def opt(name, dflt):
    v = [a[len(name)+1:] for a in sys.argv if a.startswith(name + "=")]
    return type(dflt)(v[0]) if v else dflt
POL = opt("pol", "nt"); NTK = NTV = (" " + POL.replace("+", " ")) if POL != "none" else ""
STAMP = "stamp" in sys.argv
NW = opt("nw", 8); DLY = opt("dly", 0); NIT = 32 // NW
HB = NW * 8192; ITSTRIDE = 2 * HB; STATS = NW * 16384
UPW = 8 // NW

out = []
def e(s): out.append("    " + s)
def lab(s): out.append(s + ":")
def q(r): return "v[%d:%d]" % (r, r + 3)
def d2(r): return "v[%d:%d]" % (r, r + 1)
vKd = [1, 2, 3, 4]; vKr = [5, 6, 7, 8]; vVo = 9
vm = [10, 11]; vl = [12, 13]; val = [14, 15]; vmc = [16, 17]
vt = [18, 19, 20, 21, 22, 23]
def Q(qb, s): return 24 + (qb * 4 + s) * 4
def O(blk, qb): return 56 + (blk * 2 + qb) * 4
def V(h, n): return 120 + h * 32 + n * 4
def S(h, kb, qb): return 184 + ((h * 2 + kb) * 2 + qb) * 4
def T(i): return 216 + 4 * i
sK, sV, sQ, sKT, sVT, sMK, sO = 20, 24, 28, 32, 36, 40, 44
def srd(r): return "s[%d:%d]" % (r, r + 3)
sW = 48; sLds = 49; sIt = 50
nxt = [52, 53, 54, 55]
cur = [88, 89, 90, 91]
sC = 56; sSelLo = 57; sSelHi = 58; sBig = 59; sTmp = 60; sTmp2 = 61; sOOB = 63

for l in open("cdna_kernels/%s.s.ref" % NAME).read().split("\n"):
    if l.startswith("; @launch"): break
    out.append(l)
LDS_BYTES = max(STATS + NW * 1024, 98304)
out.append("; @launch grid=(256,1,1) block=(%d,1,1) lds=%d" % (NW * 64, LDS_BYTES))
out.append('.amdgcn_target "amdgcn-amd-amdhsa--gfx950"')
out.append(".text")
out.append(".globl %s_kernel" % NAME)
out.append(".p2align 8")
out.append(".type %s_kernel,@function" % NAME)
lab("%s_kernel" % NAME)
e("s_cmp_ge_u32 s2, 256")
e("s_cbranch_scc1 L_end")
e("s_load_dwordx8 s[4:11], s[0:1], 0")
e("s_load_dwordx4 s[12:15], s[0:1], 32")
e("s_load_dwordx2 s[16:17], s[0:1], 48")
def stamp(k):
    if STAMP:
        e("s_memrealtime s[66:67]")
        e("s_waitcnt lgkmcnt(0)")
        e("s_mov_b32 s%d, s66" % (72 + k))
if STAMP:
    e("s_load_dwordx4 s[68:71], s[0:1], 56")
    e("s_memrealtime s[66:67]")
e("v_lshrrev_b32 v18, 6, v0")
e("v_and_b32 v0, 63, v0")
e("v_readfirstlane_b32 s%d, v18" % sW)
e("v_and_b32 v19, 15, v0")
e("v_lshrrev_b32 v20, 4, v0")
e("v_xor_b32 v21, v19, v20")
e("v_lshlrev_b32 v21, 4, v21")
e("v_lshl_add_u32 v%d, v20, 8, v21" % vKd[0])
for j in range(1, 4):
    e("v_xor_b32 v%d, %d, v%d" % (vKd[j], 64 * j, vKd[0]))
e("s_lshl_b32 s%d, s%d, 14" % (sLds, sW))
e("v_lshl_add_u32 v22, v19, 8, v21")
e("v_add_u32 v%d, s%d, v22" % (vKr[0], sLds))
for s in range(1, 4):
    e("v_xor_b32 v%d, %d, v%d" % (vKr[s], 64 * s, vKr[0]))
e("v_lshlrev_b32 v22, 4, v19")
e("v_lshl_add_u32 v%d, v20, 10, v22" % vVo)
e("v_lshlrev_b32 v22, 4, v20")
e("v_lshl_add_u32 v23, v19, 8, v22")
e("s_lshl_b32 s%d, s2, 19" % nxt[0])
e("s_lshl_b32 s%d, s%d, 13" % (sTmp, sW))
e("s_add_u32 s%d, s%d, s%d" % (nxt[0], nxt[0], sTmp))
e("s_add_u32 s%d, s%d, 4096" % (nxt[1], nxt[0]))
e("s_add_u32 s%d, s%d, %d" % (nxt[2], nxt[0], HB))
e("s_add_u32 s%d, s%d, %d" % (nxt[3], nxt[0], HB + 4096))
e("s_lshl_b32 s%d, s2, 13" % sTmp)
e("s_add_u32 s%d, s%d, 4096" % (sTmp2, sTmp))
e("s_mov_b32 s%d, %s" % (sC, f32hex(C)))
e("s_mov_b32 s%d, 0x05040100" % sSelLo)
e("s_mov_b32 s%d, 0x07060302" % sSelHi)
e("s_mov_b32 s%d, %s" % (sBig, f32hex(BIG)))
e("s_mov_b32 s%d, 0x80000000" % sOOB)
e("s_waitcnt lgkmcnt(0)")
if STAMP: e("s_mov_b32 s72, s66")
def mksrd(r, p, nbytes):
    e("s_mov_b32 s%d, s%d" % (r, p))
    e("s_and_b32 s%d, s%d, 0xffff" % (r + 1, p + 1))
    e("s_mov_b32 s%d, 0x%x" % (r + 2, nbytes))
    e("s_mov_b32 s%d, 0x00020000" % (r + 3))
mksrd(sQ, 4, 32 * 32 * 8 * 128 * 2)
mksrd(sK, 6, 32 * 8 * 2048 * 128 * 2)
mksrd(sV, 8, 32 * 8 * 2048 * 128 * 2)
for qb in range(2):
    for s in range(4):
        e("buffer_load_dwordx4 %s, v23, %s, s%d offen offset:%d" % (q(Q(qb, s)), srd(sQ), sTmp if qb == 0 else sTmp2, 64 * s))
mksrd(sKT, 10, 32 * 8 * 8 * 128 * 2)
mksrd(sVT, 12, 32 * 8 * 8 * 128 * 2)
mksrd(sMK, 14, 32 * 8 * 8 * 2)
mksrd(sO, 16, 32 * 32 * 8 * 128 * 2)
e("s_cmp_lg_u32 s%d, 0" % sW)
e("s_cbranch_scc1 L_notree_ld")
e("s_lshl_b32 s%d, s2, 11" % sTmp)
e("v_mov_b32 v22, s%d" % sOOB)
e("v_cmp_gt_u32 vcc, 8, v19")
e("s_nop 1")
e("v_cndmask_b32 v21, v22, v23, vcc")
for s in range(4):
    e("buffer_load_dwordx4 %s, v21, %s, s%d offen offset:%d" % (q(T(s)), srd(sKT), sTmp, 64 * s))
e("v_cmp_gt_u32 vcc, 2, v20")
e("s_nop 1")
e("v_cndmask_b32 v21, v22, v%d, vcc" % vVo)
for n in range(4):
    e("buffer_load_dwordx4 %s, v21, %s, s%d offen offset:%d" % (q(T(4 + n)), srd(sVT), sTmp, 256 * n))
e("v_and_b32 v21, 7, v19")
e("v_lshlrev_b32 v21, 4, v21")
e("v_lshl_add_u32 v21, v20, 3, v21")
e("v_cndmask_b32 v21, v22, v21, vcc")
e("s_lshr_b32 s%d, s2, 3" % sTmp)
e("s_lshl_b32 s%d, s%d, 7" % (sTmp, sTmp))
e("buffer_load_dwordx2 %s, v21, %s, s%d offen" % (d2(vt[0]), srd(sMK), sTmp))
lab("L_notree_ld")

def dmaK(h, offs):
    s0, s1 = offs[2 * h], offs[2 * h + 1]
    e("s_add_u32 m0, s%d, %d" % (sLds, h * 8192))
    e("s_nop 0")
    for j in range(4):
        e("buffer_load_dwordx4 v%d, %s, s%d offen offset:%d%s lds" % (vKd[j], srd(sK), s0, 1024 * j, NTK))
    e("s_add_u32 m0, s%d, %d" % (sLds, h * 8192 + 4096))
    e("s_nop 0")
    for j in range(4):
        e("buffer_load_dwordx4 v%d, %s, s%d offen offset:%d%s lds" % (vKd[j], srd(sK), s1, 1024 * j, NTK))
def loadV(h, offs):
    s0, s1 = offs[2 * h], offs[2 * h + 1]
    for n in range(8):
        e("buffer_load_dwordx4 %s, v%d, %s, s%d offen offset:%d%s" % (q(V(h, n)), vVo, srd(sV), s0 if n < 4 else s1, 256 * (n % 4), NTV))
def issue(g, offs):
    if g < 2: dmaK(g, offs)
    else: loadV(g - 2, offs)
def issue_after(p):
    g = p - DLY
    if g >= 0: issue(g, nxt)
    else: issue(g + 4, cur)
for g in range(4 - DLY): issue(g, nxt)
VMW = (3 - DLY) * 8

def xreduce(op, regs, tmps):
    for sw in ("v_permlane32_swap_b32", "v_permlane16_swap_b32"):
        for r, t in zip(regs, tmps): e("v_mov_b32 v%d, v%d" % (t, r))
        e("s_nop 1")
        for r, t in zip(regs, tmps): e("%s v%d, v%d" % (sw, r, t))
        e("s_nop 0")
        for r, t in zip(regs, tmps): e("%s v%d, v%d, v%d" % (op, r, r, t))

e("s_mov_b32 s%d, 0" % sIt)
e("s_cmp_lg_u32 s%d, 0" % sW)
e("s_cbranch_scc1 L_notree")
e("s_waitcnt vmcnt(%d)" % ((4 - DLY) * 8))
for s in range(4):
    for qb in range(2):
        e("v_mfma_f32_16x16x32_bf16 %s, %s, %s, %s" % (q(S(0, 0, qb)), q(T(s)), q(Q(qb, s)), "0" if s == 0 else q(S(0, 0, qb))))
B = S(1, 0, 0)
e("v_lshlrev_b32 v%d, 16, v%d" % (B, vt[0]))
e("v_and_b32 v%d, 0xffff0000, v%d" % (B + 1, vt[0]))
e("v_lshlrev_b32 v%d, 16, v%d" % (B + 2, vt[1]))
e("v_and_b32 v%d, 0xffff0000, v%d" % (B + 3, vt[1]))
e("v_mov_b32 v%d, s%d" % (vt[2], sBig))
for r in range(4):
    e("v_fma_f32 v%d, v%d, v%d, -v%d" % (B + r, B + r, vt[2], vt[2]))
e("s_nop 3")
for qb in range(2):
    for r in range(4):
        e("v_add_f32 v%d, v%d, v%d" % (S(0, 0, qb) + r, S(0, 0, qb) + r, B + r))
for qb in range(2):
    s0 = S(0, 0, qb)
    e("v_max3_f32 v%d, v%d, v%d, v%d" % (vm[qb], s0, s0 + 1, s0 + 2))
    e("v_max_f32 v%d, v%d, v%d" % (vm[qb], vm[qb], s0 + 3))
xreduce("v_max_f32", vm, vt[0:2])
for qb in range(2):
    e("v_mul_f32 v%d, s%d, v%d" % (vmc[qb], sC, vm[qb]))
for qb in range(2):
    for r in range(4):
        x = S(0, 0, qb) + r
        e("v_fma_f32 v%d, v%d, s%d, -v%d" % (x, x, sC, vmc[qb]))
for qb in range(2):
    for r in range(4):
        x = S(0, 0, qb) + r
        e("v_exp_f32 v%d, v%d" % (x, x))
e("s_nop 0")
for qb in range(2):
    s0 = S(0, 0, qb)
    e("v_add_f32 v%d, v%d, v%d" % (vl[qb], s0, s0 + 1))
    e("v_add_f32 v%d, v%d, v%d" % (vt[qb], s0 + 2, s0 + 3))
    e("v_add_f32 v%d, v%d, v%d" % (vl[qb], vl[qb], vt[qb]))
    e("v_cvt_pk_bf16_f32 v%d, v%d, v%d" % (s0, s0, s0 + 1))
    e("v_cvt_pk_bf16_f32 v%d, v%d, v%d" % (s0 + 1, s0 + 2, s0 + 3))
TB = S(1, 0, 0)
for blk in range(8):
    j, ee = blk // 2, blk % 2
    for qq in range(2):
        e("v_perm_b32 v%d, v%d, v%d, s%d" % (TB + 2 * blk + qq, T(4 + 2 * qq + 1) + j, T(4 + 2 * qq) + j, sSelHi if ee else sSelLo))
e("s_nop 1")
for blk in range(8):
    for qb in range(2):
        e("v_mfma_f32_16x16x16_bf16 %s, %s, %s, 0" % (q(O(blk, qb)), d2(TB + 2 * blk), d2(S(0, 0, qb))))
e("s_branch L_loop")
lab("L_notree")
for r in range(64): e("v_mov_b32 v%d, 0" % (56 + r))
for qb in range(2):
    e("v_mov_b32 v%d, 0xff800000" % vm[qb])
    e("v_mov_b32 v%d, 0" % vl[qb])

lab("L_loop")
for k in range(4): e("s_mov_b32 s%d, s%d" % (cur[k], nxt[k]))
e("s_add_u32 s%d, s%d, %d" % (sTmp, cur[0], ITSTRIDE))
e("s_cmp_lt_u32 s%d, %d" % (sIt, NIT - 1))
e("s_cselect_b32 s%d, s%d, s%d" % (nxt[0], sTmp, sOOB))
e("s_add_u32 s%d, s%d, 4096" % (nxt[1], nxt[0]))
e("s_add_u32 s%d, s%d, %d" % (nxt[2], nxt[0], HB))
e("s_add_u32 s%d, s%d, %d" % (nxt[3], nxt[0], HB + 4096))
def qk(h):
    e("s_waitcnt vmcnt(%d)" % VMW)
    if STAMP and h == 0:
        e("s_cmp_lg_u32 s%d, 0" % sIt)
        e("s_cbranch_scc1 L_nostamp")
        stamp(1)
        lab("L_nostamp")
    for kb in range(2):
        for s in range(4):
            e("ds_read_b128 %s, v%d offset:%d" % (q(T(kb * 4 + s)), vKr[s], h * 8192 + kb * 4096))
    for kb in range(2):
        for s in range(4):
            e("s_waitcnt lgkmcnt(%d)" % (7 - kb * 4 - s))
            for qb in range(2):
                e("v_mfma_f32_16x16x32_bf16 %s, %s, %s, %s" % (q(S(h, kb, qb)), q(T(kb * 4 + s)), q(Q(qb, s)), "0" if s == 0 else q(S(h, kb, qb))))
    issue_after(h)
qk(0)
qk(1)
for qb in range(2):
    vals = [S(h, kb, qb) + r for h in range(2) for kb in range(2) for r in range(4)]
    e("v_max3_f32 v%d, v%d, v%d, v%d" % (vt[qb], vals[0], vals[1], vm[qb]))
    for k in range(2, 16, 2):
        e("v_max3_f32 v%d, v%d, v%d, v%d" % (vt[qb], vals[k], vals[k + 1], vt[qb]))
xreduce("v_max_f32", vt[0:2], vt[2:4])
for qb in range(2):
    e("v_sub_f32 v%d, v%d, v%d" % (val[qb], vm[qb], vt[qb]))
    e("v_mul_f32 v%d, s%d, v%d" % (vmc[qb], sC, vt[qb]))
    e("v_mul_f32 v%d, s%d, v%d" % (val[qb], sC, val[qb]))
    e("v_mov_b32 v%d, v%d" % (vm[qb], vt[qb]))
for qb in range(2):
    e("v_exp_f32 v%d, v%d" % (val[qb], val[qb]))
allS = [(h, kb, qb, r) for h in range(2) for kb in range(2) for qb in range(2) for r in range(4)]
for (h, kb, qb, r) in allS:
    x = S(h, kb, qb) + r
    e("v_fma_f32 v%d, v%d, s%d, -v%d" % (x, x, sC, vmc[qb]))
for (h, kb, qb, r) in allS:
    x = S(h, kb, qb) + r
    e("v_exp_f32 v%d, v%d" % (x, x))
for blk in range(8):
    for qb in range(2):
        for hh in range(2):
            o = O(blk, qb) + 2 * hh
            e("v_pk_mul_f32 %s, %s, %s op_sel:[0,%d] op_sel_hi:[1,%d]" % (d2(o), d2(o), d2(val[0]), qb, qb))
for qb in range(2):
    vals = [S(h, kb, qb) + r for h in range(2) for kb in range(2) for r in range(4)]
    e("v_add_f32 v%d, v%d, v%d" % (vt[qb], vals[0], vals[1]))
    e("v_add_f32 v%d, v%d, v%d" % (vt[2 + qb], vals[2], vals[3]))
    for k in range(4, 16, 2):
        e("v_add_f32 v%d, v%d, v%d" % (vt[qb], vt[qb], vals[k]))
        e("v_add_f32 v%d, v%d, v%d" % (vt[2 + qb], vt[2 + qb], vals[k + 1]))
    e("v_add_f32 v%d, v%d, v%d" % (vt[qb], vt[qb], vt[2 + qb]))
    e("v_fma_f32 v%d, v%d, v%d, v%d" % (vl[qb], vl[qb], val[qb], vt[qb]))
for h in range(2):
    for qb in range(2):
        a, b = S(h, 0, qb), S(h, 1, qb)
        e("v_cvt_pk_bf16_f32 v%d, v%d, v%d" % (a, a, a + 1))
        e("v_cvt_pk_bf16_f32 v%d, v%d, v%d" % (a + 1, a + 2, a + 3))
        e("v_cvt_pk_bf16_f32 v%d, v%d, v%d" % (a + 2, b, b + 1))
        e("v_cvt_pk_bf16_f32 v%d, v%d, v%d" % (a + 3, b + 2, b + 3))
def pv(h):
    e("s_waitcnt vmcnt(%d)" % VMW)
    def perms(blk):
        j, ee = blk // 2, blk % 2
        for qq in range(4):
            e("v_perm_b32 v%d, v%d, v%d, s%d" % (T(blk) + qq, V(h, 2 * qq + 1) + j, V(h, 2 * qq) + j, sSelHi if ee else sSelLo))
    perms(0)
    for blk in range(8):
        if blk < 7: perms(blk + 1)
        else: issue_after(2 + h)
        for qb in range(2):
            e("v_mfma_f32_16x16x32_bf16 %s, %s, %s, %s" % (q(O(blk, qb)), q(T(blk)), q(S(h, 0, qb)), q(O(blk, qb))))
pv(0)
pv(1)
e("s_add_u32 s%d, s%d, 1" % (sIt, sIt))
e("s_cmp_lt_u32 s%d, %d" % (sIt, NIT))
e("s_cbranch_scc1 L_loop")

stamp(2)
xreduce("v_add_f32", vl, vt[0:2])
e("v_lshlrev_b32 v%d, 4, v0" % vt[2])
e("v_add_u32 v%d, s%d, v%d" % (vt[3], sLds, vt[2]))
e("s_lshl_b32 s%d, s%d, 10" % (sTmp, sW))
e("s_add_u32 s%d, s%d, %d" % (sTmp, sTmp, STATS))
e("v_add_u32 v%d, s%d, v%d" % (vt[4], sTmp, vt[2]))
e("v_mov_b32 v%d, v%d" % (T(0), vm[0]))
e("v_mov_b32 v%d, v%d" % (T(0) + 1, vl[0]))
e("v_mov_b32 v%d, v%d" % (T(0) + 2, vm[1]))
e("v_mov_b32 v%d, v%d" % (T(0) + 3, vl[1]))
e("s_waitcnt vmcnt(0)")
e("ds_write_b128 v%d, %s" % (vt[4], q(T(0))))
for qb in range(2):
    for r in range(4):
        u = qb * 4 + r
        for blk in range(8):
            e("v_mov_b32 v%d, v%d" % (120 + u * 8 + blk, O(blk, qb) + r))
        for hh in range(2):
            e("ds_write_b128 v%d, %s offset:%d" % (vt[3], q(120 + u * 8 + hh * 4), u * 2048 + hh * 1024))
e("s_mul_i32 s62, s%d, %d" % (sW, UPW))
e("s_lshr_b32 s%d, s62, 2" % sTmp)
e("s_lshl_b32 s%d, s%d, 3" % (sTmp2, sTmp))
e("s_add_u32 s%d, s%d, %d" % (sTmp2, sTmp2, STATS))
e("v_add_u32 v%d, s%d, v%d" % (vt[4], sTmp2, vt[2]))
e("s_lshl_b32 s%d, s62, 11" % sTmp2)
e("v_add_u32 v%d, s%d, v%d" % (vt[3], sTmp2, vt[2]))
e("v_add_u32 v%d, 0x10000, v%d" % (vt[5], vt[3]))
e("v_and_b32 v1, 15, v0")
e("v_lshrrev_b32 v2, 4, v0")
e("v_lshlrev_b32 v1, 8, v1")
e("v_lshl_add_u32 v1, v2, 6, v1")
e("s_lshl_b32 s%d, s%d, 12" % (sTmp, sTmp))
e("s_and_b32 s%d, s62, 3" % sTmp2)
e("s_lshl_b32 s%d, s%d, 4" % (sTmp2, sTmp2))
e("s_add_u32 s%d, s%d, s%d" % (sTmp, sTmp, sTmp2))
e("s_lshl_b32 s%d, s2, 13" % sTmp2)
e("s_add_u32 s%d, s%d, s%d" % (sTmp, sTmp, sTmp2))
e("s_waitcnt lgkmcnt(0)")
e("s_barrier")
SM = 24
for w in range(NW):
    e("ds_read_b64 %s, v%d offset:%d" % (d2(SM + 2 * w), vt[4], w * 1024))
OR = 56
NR = 2 * UPW
for w in range(NW):
    for hh in range(NR):
        e("ds_read_b128 %s, v%d offset:%d" % (q(OR + (w * NR + hh) * 4), vt[3] if w < 4 else vt[5], (w % 4) * 16384 + hh * 1024))
e("s_waitcnt lgkmcnt(15)")
ms = [SM + 2 * w for w in range(NW)]
e("v_max3_f32 v2, v%d, v%d, v%d" % tuple(ms[0:3]))
k = 3
while k + 1 < NW:
    e("v_max3_f32 v2, v2, v%d, v%d" % (ms[k], ms[k + 1])); k += 2
if k < NW: e("v_max_f32 v2, v2, v%d" % ms[k])
for x in ms: e("v_sub_f32 v%d, v%d, v2" % (x, x))
for x in ms: e("v_mul_f32 v%d, s%d, v%d" % (x, sC, x))
for x in ms: e("v_exp_f32 v%d, v%d" % (x, x))
e("s_nop 0")
e("v_mul_f32 v3, v%d, v%d" % (SM, SM + 1))
for w in range(1, NW):
    e("v_fmac_f32 v3, v%d, v%d" % (SM + 2 * w, SM + 2 * w + 1))
e("v_rcp_f32 v3, v3")
AC = 120; NA = 4 * NR
for w in range(NW):
    e("s_waitcnt lgkmcnt(%d)" % (16 - NR * (w + 1)))
    for k in range(NA):
        if w == 0: e("v_mul_f32 v%d, v%d, v%d" % (AC + k, SM, OR + k))
        else: e("v_fmac_f32 v%d, v%d, v%d" % (AC + k, SM + 2 * w, OR + w * NA + k))
for k in range(NA):
    e("v_mul_f32 v%d, v%d, v3" % (AC + k, AC + k))
for k in range(NA // 2):
    e("v_cvt_pk_bf16_f32 v%d, v%d, v%d" % (40 + k, AC + 2 * k, AC + 1 + 2 * k))
for u in range(UPW):
    e("buffer_store_dwordx4 %s, v1, %s, s%d offen offset:%d" % (q(40 + 4 * u), srd(sO), sTmp, 16 * u))
if STAMP:
    e("s_waitcnt vmcnt(0)")
    stamp(3)
    mksrd(80, 70, 1 << 20)
    e("s_mov_b64 exec, 1")
    e("s_lshl_b32 s84, s2, 3")
    e("s_add_u32 s84, s84, s%d" % sW)
    e("s_lshl_b32 s84, s84, 4")
    e("v_mov_b32 v1, 0")
    for k in range(4): e("v_mov_b32 v%d, s%d" % (4 + k, 72 + k))
    e("buffer_store_dwordx4 v[4:7], v1, s[80:83], s84 offen")
    if NW == 4: e("buffer_store_dwordx4 v[4:7], v1, s[80:83], s84 offen offset:64")
lab("L_end")
e("s_endpgm")
out.append('.section .rodata,"a"')
out.append(".p2align 6")
out.append(".amdhsa_kernel %s_kernel" % NAME)
out.append("  .amdhsa_next_free_vgpr 248")
out.append("  .amdhsa_next_free_sgpr 96")
out.append("  .amdhsa_accum_offset 248")
out.append("  .amdhsa_group_segment_fixed_size 0")
out.append("  .amdhsa_kernarg_size 72")
out.append("  .amdhsa_user_sgpr_count 2")
out.append("  .amdhsa_user_sgpr_kernarg_segment_ptr 1")
out.append("  .amdhsa_system_sgpr_workgroup_id_x 1")
out.append(".end_amdhsa_kernel")
print("\n".join(out))
```

```python
import struct, sys, math
NAME = "standalone__tree_speculative_verify_tree_attention_over_candidate_token_tree__sampling"
def f32hex(x): return "0x%08x" % struct.unpack("<I", struct.pack("<f", x))[0]
SCALE = 128 ** -0.5
C = SCALE * math.log2(math.e)
BIG = 1e9 / SCALE
def opt(name, dflt):
    v = [a[len(name)+1:] for a in sys.argv if a.startswith(name + "=")]
    return type(dflt)(v[0]) if v else dflt
POL = opt("pol", "nt"); NTK = NTV = (" " + POL.replace("+", " ")) if POL != "none" else ""
STAMP = "stamp" in sys.argv
NW = opt("nw", 8); DLY = opt("dly", 0); NIT = 32 // NW
HB = NW * 8192; ITSTRIDE = 2 * HB; STATS = NW * 16384
UPW = 8 // NW

out = []
def e(s): out.append("    " + s)
def lab(s): out.append(s + ":")
def q(r): return "v[%d:%d]" % (r, r + 3)
def d2(r): return "v[%d:%d]" % (r, r + 1)
vKd = [1, 2, 3, 4]; vKr = [5, 6, 7, 8]; vVo = 9
vm = [10, 11]; vl = [12, 13]; val = [14, 15]; vmc = [16, 17]
vt = [18, 19, 20, 21, 22, 23]
def Q(qb, s): return 24 + (qb * 4 + s) * 4
def O(blk, qb): return 56 + (blk * 2 + qb) * 4
def V(h, n): return 120 + h * 32 + n * 4
def S(h, kb, qb): return 184 + ((h * 2 + kb) * 2 + qb) * 4
def T(i): return 216 + 4 * i
sK, sV, sQ, sKT, sVT, sMK, sO = 20, 24, 28, 32, 36, 40, 44
def srd(r): return "s[%d:%d]" % (r, r + 3)
sW = 48; sLds = 49; sIt = 50
nxt = [52, 53, 54, 55]
cur = [88, 89, 90, 91]
sC = 56; sSelLo = 57; sSelHi = 58; sBig = 59; sTmp = 60; sTmp2 = 61; sOOB = 63

for l in open("cdna_kernels/%s.s.ref" % NAME).read().split("\n"):
    if l.startswith("; @launch"): break
    out.append(l)
LDS_BYTES = max(STATS + NW * 1024, 98304)
out.append("; @launch grid=(256,1,1) block=(%d,1,1) lds=%d" % (NW * 64, LDS_BYTES))
out.append('.amdgcn_target "amdgcn-amd-amdhsa--gfx950"')
out.append(".text")
out.append(".globl %s_kernel" % NAME)
out.append(".p2align 8")
out.append(".type %s_kernel,@function" % NAME)
lab("%s_kernel" % NAME)
e("s_cmp_ge_u32 s2, 256")
e("s_cbranch_scc1 L_end")
e("s_load_dwordx8 s[4:11], s[0:1], 0")
e("s_mov_b32 s85, s2")
if "map" in sys.argv:
    e("s_and_b32 s3, s2, 7")
    e("s_lshl_b32 s3, s3, 5")
    e("s_lshr_b32 s2, s2, 3")
    e("s_or_b32 s2, s2, s3")
e("s_load_dwordx4 s[12:15], s[0:1], 32")
e("s_load_dwordx2 s[16:17], s[0:1], 48")
def stamp(k):
    if STAMP:
        e("s_memrealtime s[66:67]")
        e("s_waitcnt lgkmcnt(0)")
        e("s_mov_b32 s%d, s66" % (72 + k))
if STAMP:
    e("s_load_dwordx4 s[68:71], s[0:1], 56")
    e("s_memrealtime s[66:67]")
e("v_lshrrev_b32 v18, 6, v0")
e("v_and_b32 v0, 63, v0")
e("v_readfirstlane_b32 s%d, v18" % sW)
e("v_and_b32 v19, 15, v0")
e("v_lshrrev_b32 v20, 4, v0")
e("v_xor_b32 v21, v19, v20")
e("v_lshlrev_b32 v21, 4, v21")
e("v_lshl_add_u32 v%d, v20, 8, v21" % vKd[0])
for j in range(1, 4):
    e("v_xor_b32 v%d, %d, v%d" % (vKd[j], 64 * j, vKd[0]))
e("s_lshl_b32 s%d, s%d, 14" % (sLds, sW))
e("v_lshl_add_u32 v22, v19, 8, v21")
e("v_add_u32 v%d, s%d, v22" % (vKr[0], sLds))
for s in range(1, 4):
    e("v_xor_b32 v%d, %d, v%d" % (vKr[s], 64 * s, vKr[0]))
e("v_lshlrev_b32 v22, 4, v19")
e("v_lshl_add_u32 v%d, v20, 10, v22" % vVo)
e("v_lshlrev_b32 v22, 4, v20")
e("v_lshl_add_u32 v23, v19, 8, v22")
e("s_lshl_b32 s%d, s2, 19" % nxt[0])
e("s_lshl_b32 s%d, s%d, 13" % (sTmp, sW))
e("s_add_u32 s%d, s%d, s%d" % (nxt[0], nxt[0], sTmp))
e("s_add_u32 s%d, s%d, 4096" % (nxt[1], nxt[0]))
e("s_add_u32 s%d, s%d, %d" % (nxt[2], nxt[0], HB))
e("s_add_u32 s%d, s%d, %d" % (nxt[3], nxt[0], HB + 4096))
e("s_lshl_b32 s%d, s2, 13" % sTmp)
e("s_add_u32 s%d, s%d, 4096" % (sTmp2, sTmp))
e("s_mov_b32 s%d, %s" % (sC, f32hex(C)))
e("s_mov_b32 s%d, 0x05040100" % sSelLo)
e("s_mov_b32 s%d, 0x07060302" % sSelHi)
e("s_mov_b32 s%d, %s" % (sBig, f32hex(BIG)))
e("s_mov_b32 s%d, 0x80000000" % sOOB)
e("s_waitcnt lgkmcnt(0)")
if STAMP: e("s_mov_b32 s72, s66")
def mksrd(r, p, nbytes):
    e("s_mov_b32 s%d, s%d" % (r, p))
    e("s_and_b32 s%d, s%d, 0xffff" % (r + 1, p + 1))
    e("s_mov_b32 s%d, 0x%x" % (r + 2, nbytes))
    e("s_mov_b32 s%d, 0x00020000" % (r + 3))
mksrd(sQ, 4, 32 * 32 * 8 * 128 * 2)
mksrd(sK, 6, 32 * 8 * 2048 * 128 * 2)
mksrd(sV, 8, 32 * 8 * 2048 * 128 * 2)
for qb in range(2):
    for s in range(4):
        e("buffer_load_dwordx4 %s, v23, %s, s%d offen offset:%d" % (q(Q(qb, s)), srd(sQ), sTmp if qb == 0 else sTmp2, 64 * s))
mksrd(sKT, 10, 32 * 8 * 8 * 128 * 2)
mksrd(sVT, 12, 32 * 8 * 8 * 128 * 2)
mksrd(sMK, 14, 32 * 8 * 8 * 2)
mksrd(sO, 16, 32 * 32 * 8 * 128 * 2)
e("s_cmp_lg_u32 s%d, 0" % sW)
e("s_cbranch_scc1 L_notree_ld")
e("s_lshl_b32 s%d, s2, 11" % sTmp)
e("v_mov_b32 v22, s%d" % sOOB)
e("v_cmp_gt_u32 vcc, 8, v19")
e("s_nop 1")
e("v_cndmask_b32 v21, v22, v23, vcc")
for s in range(4):
    e("buffer_load_dwordx4 %s, v21, %s, s%d offen offset:%d" % (q(T(s)), srd(sKT), sTmp, 64 * s))
e("v_cmp_gt_u32 vcc, 2, v20")
e("s_nop 1")
e("v_cndmask_b32 v21, v22, v%d, vcc" % vVo)
for n in range(4):
    e("buffer_load_dwordx4 %s, v21, %s, s%d offen offset:%d" % (q(T(4 + n)), srd(sVT), sTmp, 256 * n))
e("v_and_b32 v21, 7, v19")
e("v_lshlrev_b32 v21, 4, v21")
e("v_lshl_add_u32 v21, v20, 3, v21")
e("v_cndmask_b32 v21, v22, v21, vcc")
e("s_lshr_b32 s%d, s2, 3" % sTmp)
e("s_lshl_b32 s%d, s%d, 7" % (sTmp, sTmp))
e("buffer_load_dwordx2 %s, v21, %s, s%d offen" % (d2(vt[0]), srd(sMK), sTmp))
lab("L_notree_ld")

def dmaK(h, offs):
    s0, s1 = offs[2 * h], offs[2 * h + 1]
    e("s_add_u32 m0, s%d, %d" % (sLds, h * 8192))
    e("s_nop 0")
    for j in range(4):
        e("buffer_load_dwordx4 v%d, %s, s%d offen offset:%d%s lds" % (vKd[j], srd(sK), s0, 1024 * j, NTK))
    e("s_add_u32 m0, s%d, %d" % (sLds, h * 8192 + 4096))
    e("s_nop 0")
    for j in range(4):
        e("buffer_load_dwordx4 v%d, %s, s%d offen offset:%d%s lds" % (vKd[j], srd(sK), s1, 1024 * j, NTK))
def loadV(h, offs):
    s0, s1 = offs[2 * h], offs[2 * h + 1]
    for n in range(8):
        e("buffer_load_dwordx4 %s, v%d, %s, s%d offen offset:%d%s" % (q(V(h, n)), vVo, srd(sV), s0 if n < 4 else s1, 256 * (n % 4), NTV))
def issue(g, offs):
    if g < 2: dmaK(g, offs)
    else: loadV(g - 2, offs)
def issue_after(p):
    g = p - DLY
    if g >= 0: issue(g, nxt)
    else: issue(g + 4, cur)
for g in range(4 - DLY): issue(g, nxt)
VMW = (3 - DLY) * 8

def xreduce(op, regs, tmps):
    for sw in ("v_permlane32_swap_b32", "v_permlane16_swap_b32"):
        for r, t in zip(regs, tmps): e("v_mov_b32 v%d, v%d" % (t, r))
        e("s_nop 1")
        for r, t in zip(regs, tmps): e("%s v%d, v%d" % (sw, r, t))
        e("s_nop 0")
        for r, t in zip(regs, tmps): e("%s v%d, v%d, v%d" % (op, r, r, t))

e("s_mov_b32 s%d, 0" % sIt)
e("s_cmp_lg_u32 s%d, 0" % sW)
e("s_cbranch_scc1 L_notree")
e("s_waitcnt vmcnt(%d)" % ((4 - DLY) * 8))
for s in range(4):
    for qb in range(2):
        e("v_mfma_f32_16x16x32_bf16 %s, %s, %s, %s" % (q(S(0, 0, qb)), q(T(s)), q(Q(qb, s)), "0" if s == 0 else q(S(0, 0, qb))))
B = S(1, 0, 0)
e("v_lshlrev_b32 v%d, 16, v%d" % (B, vt[0]))
e("v_and_b32 v%d, 0xffff0000, v%d" % (B + 1, vt[0]))
e("v_lshlrev_b32 v%d, 16, v%d" % (B + 2, vt[1]))
e("v_and_b32 v%d, 0xffff0000, v%d" % (B + 3, vt[1]))
e("v_mov_b32 v%d, s%d" % (vt[2], sBig))
for r in range(4):
    e("v_fma_f32 v%d, v%d, v%d, -v%d" % (B + r, B + r, vt[2], vt[2]))
e("s_nop 3")
for qb in range(2):
    for r in range(4):
        e("v_add_f32 v%d, v%d, v%d" % (S(0, 0, qb) + r, S(0, 0, qb) + r, B + r))
for qb in range(2):
    s0 = S(0, 0, qb)
    e("v_max3_f32 v%d, v%d, v%d, v%d" % (vm[qb], s0, s0 + 1, s0 + 2))
    e("v_max_f32 v%d, v%d, v%d" % (vm[qb], vm[qb], s0 + 3))
xreduce("v_max_f32", vm, vt[0:2])
for qb in range(2):
    e("v_mul_f32 v%d, s%d, v%d" % (vmc[qb], sC, vm[qb]))
for qb in range(2):
    for r in range(4):
        x = S(0, 0, qb) + r
        e("v_fma_f32 v%d, v%d, s%d, -v%d" % (x, x, sC, vmc[qb]))
for qb in range(2):
    for r in range(4):
        x = S(0, 0, qb) + r
        e("v_exp_f32 v%d, v%d" % (x, x))
e("s_nop 0")
for qb in range(2):
    s0 = S(0, 0, qb)
    e("v_add_f32 v%d, v%d, v%d" % (vl[qb], s0, s0 + 1))
    e("v_add_f32 v%d, v%d, v%d" % (vt[qb], s0 + 2, s0 + 3))
    e("v_add_f32 v%d, v%d, v%d" % (vl[qb], vl[qb], vt[qb]))
    e("v_cvt_pk_bf16_f32 v%d, v%d, v%d" % (s0, s0, s0 + 1))
    e("v_cvt_pk_bf16_f32 v%d, v%d, v%d" % (s0 + 1, s0 + 2, s0 + 3))
TB = S(1, 0, 0)
for blk in range(8):
    j, ee = blk // 2, blk % 2
    for qq in range(2):
        e("v_perm_b32 v%d, v%d, v%d, s%d" % (TB + 2 * blk + qq, T(4 + 2 * qq + 1) + j, T(4 + 2 * qq) + j, sSelHi if ee else sSelLo))
e("s_nop 1")
for blk in range(8):
    for qb in range(2):
        e("v_mfma_f32_16x16x16_bf16 %s, %s, %s, 0" % (q(O(blk, qb)), d2(TB + 2 * blk), d2(S(0, 0, qb))))
e("s_branch L_loop")
lab("L_notree")
for r in range(64): e("v_mov_b32 v%d, 0" % (56 + r))
for qb in range(2):
    e("v_mov_b32 v%d, 0xff800000" % vm[qb])
    e("v_mov_b32 v%d, 0" % vl[qb])

lab("L_loop")
for k in range(4): e("s_mov_b32 s%d, s%d" % (cur[k], nxt[k]))
e("s_add_u32 s%d, s%d, %d" % (sTmp, cur[0], ITSTRIDE))
e("s_cmp_lt_u32 s%d, %d" % (sIt, NIT - 1))
e("s_cselect_b32 s%d, s%d, s%d" % (nxt[0], sTmp, sOOB))
e("s_add_u32 s%d, s%d, 4096" % (nxt[1], nxt[0]))
e("s_add_u32 s%d, s%d, %d" % (nxt[2], nxt[0], HB))
e("s_add_u32 s%d, s%d, %d" % (nxt[3], nxt[0], HB + 4096))
def qk(h):
    e("s_waitcnt vmcnt(%d)" % VMW)
    if STAMP and h == 0:
        e("s_cmp_lg_u32 s%d, 0" % sIt)
        e("s_cbranch_scc1 L_nostamp")
        stamp(1)
        lab("L_nostamp")
    for kb in range(2):
        for s in range(4):
            e("ds_read_b128 %s, v%d offset:%d" % (q(T(kb * 4 + s)), vKr[s], h * 8192 + kb * 4096))
    for kb in range(2):
        for s in range(4):
            e("s_waitcnt lgkmcnt(%d)" % (7 - kb * 4 - s))
            for qb in range(2):
                e("v_mfma_f32_16x16x32_bf16 %s, %s, %s, %s" % (q(S(h, kb, qb)), q(T(kb * 4 + s)), q(Q(qb, s)), "0" if s == 0 else q(S(h, kb, qb))))
    issue_after(h)
qk(0)
qk(1)
for qb in range(2):
    vals = [S(h, kb, qb) + r for h in range(2) for kb in range(2) for r in range(4)]
    e("v_max3_f32 v%d, v%d, v%d, v%d" % (vt[qb], vals[0], vals[1], vm[qb]))
    for k in range(2, 16, 2):
        e("v_max3_f32 v%d, v%d, v%d, v%d" % (vt[qb], vals[k], vals[k + 1], vt[qb]))
xreduce("v_max_f32", vt[0:2], vt[2:4])
for qb in range(2):
    e("v_sub_f32 v%d, v%d, v%d" % (val[qb], vm[qb], vt[qb]))
    e("v_mul_f32 v%d, s%d, v%d" % (vmc[qb], sC, vt[qb]))
    e("v_mul_f32 v%d, s%d, v%d" % (val[qb], sC, val[qb]))
    e("v_mov_b32 v%d, v%d" % (vm[qb], vt[qb]))
for qb in range(2):
    e("v_exp_f32 v%d, v%d" % (val[qb], val[qb]))
allS = [(h, kb, qb, r) for h in range(2) for kb in range(2) for qb in range(2) for r in range(4)]
for (h, kb, qb, r) in allS:
    x = S(h, kb, qb) + r
    e("v_fma_f32 v%d, v%d, s%d, -v%d" % (x, x, sC, vmc[qb]))
for (h, kb, qb, r) in allS:
    x = S(h, kb, qb) + r
    e("v_exp_f32 v%d, v%d" % (x, x))
for blk in range(8):
    for qb in range(2):
        for hh in range(2):
            o = O(blk, qb) + 2 * hh
            e("v_pk_mul_f32 %s, %s, %s op_sel:[0,%d] op_sel_hi:[1,%d]" % (d2(o), d2(o), d2(val[0]), qb, qb))
for qb in range(2):
    vals = [S(h, kb, qb) + r for h in range(2) for kb in range(2) for r in range(4)]
    e("v_add_f32 v%d, v%d, v%d" % (vt[qb], vals[0], vals[1]))
    e("v_add_f32 v%d, v%d, v%d" % (vt[2 + qb], vals[2], vals[3]))
    for k in range(4, 16, 2):
        e("v_add_f32 v%d, v%d, v%d" % (vt[qb], vt[qb], vals[k]))
        e("v_add_f32 v%d, v%d, v%d" % (vt[2 + qb], vt[2 + qb], vals[k + 1]))
    e("v_add_f32 v%d, v%d, v%d" % (vt[qb], vt[qb], vt[2 + qb]))
    e("v_fma_f32 v%d, v%d, v%d, v%d" % (vl[qb], vl[qb], val[qb], vt[qb]))
for h in range(2):
    for qb in range(2):
        a, b = S(h, 0, qb), S(h, 1, qb)
        e("v_cvt_pk_bf16_f32 v%d, v%d, v%d" % (a, a, a + 1))
        e("v_cvt_pk_bf16_f32 v%d, v%d, v%d" % (a + 1, a + 2, a + 3))
        e("v_cvt_pk_bf16_f32 v%d, v%d, v%d" % (a + 2, b, b + 1))
        e("v_cvt_pk_bf16_f32 v%d, v%d, v%d" % (a + 3, b + 2, b + 3))
def pv(h):
    e("s_waitcnt vmcnt(%d)" % VMW)
    def perms(blk):
        j, ee = blk // 2, blk % 2
        for qq in range(4):
            e("v_perm_b32 v%d, v%d, v%d, s%d" % (T(blk) + qq, V(h, 2 * qq + 1) + j, V(h, 2 * qq) + j, sSelHi if ee else sSelLo))
    perms(0)
    for blk in range(8):
        if blk < 7: perms(blk + 1)
        else: issue_after(2 + h)
        for qb in range(2):
            e("v_mfma_f32_16x16x32_bf16 %s, %s, %s, %s" % (q(O(blk, qb)), q(T(blk)), q(S(h, 0, qb)), q(O(blk, qb))))
pv(0)
pv(1)
e("s_add_u32 s%d, s%d, 1" % (sIt, sIt))
e("s_cmp_lt_u32 s%d, %d" % (sIt, NIT))
e("s_cbranch_scc1 L_loop")

stamp(2)
xreduce("v_add_f32", vl, vt[0:2])
e("v_lshlrev_b32 v%d, 4, v0" % vt[2])
e("v_add_u32 v%d, s%d, v%d" % (vt[3], sLds, vt[2]))
e("s_lshl_b32 s%d, s%d, 10" % (sTmp, sW))
e("s_add_u32 s%d, s%d, %d" % (sTmp, sTmp, STATS))
e("v_add_u32 v%d, s%d, v%d" % (vt[4], sTmp, vt[2]))
e("v_mov_b32 v%d, v%d" % (T(0), vm[0]))
e("v_mov_b32 v%d, v%d" % (T(0) + 1, vl[0]))
e("v_mov_b32 v%d, v%d" % (T(0) + 2, vm[1]))
e("v_mov_b32 v%d, v%d" % (T(0) + 3, vl[1]))
e("s_waitcnt vmcnt(0)")
e("ds_write_b128 v%d, %s" % (vt[4], q(T(0))))
for qb in range(2):
    for r in range(4):
        u = qb * 4 + r
        for blk in range(8):
            e("v_mov_b32 v%d, v%d" % (120 + u * 8 + blk, O(blk, qb) + r))
        for hh in range(2):
            e("ds_write_b128 v%d, %s offset:%d" % (vt[3], q(120 + u * 8 + hh * 4), u * 2048 + hh * 1024))
e("s_mul_i32 s62, s%d, %d" % (sW, UPW))
e("s_lshr_b32 s%d, s62, 2" % sTmp)
e("s_lshl_b32 s%d, s%d, 3" % (sTmp2, sTmp))
e("s_add_u32 s%d, s%d, %d" % (sTmp2, sTmp2, STATS))
e("v_add_u32 v%d, s%d, v%d" % (vt[4], sTmp2, vt[2]))
e("s_lshl_b32 s%d, s62, 11" % sTmp2)
e("v_add_u32 v%d, s%d, v%d" % (vt[3], sTmp2, vt[2]))
e("v_add_u32 v%d, 0x10000, v%d" % (vt[5], vt[3]))
e("v_and_b32 v1, 15, v0")
e("v_lshrrev_b32 v2, 4, v0")
e("v_lshlrev_b32 v1, 8, v1")
e("v_lshl_add_u32 v1, v2, 6, v1")
e("s_lshl_b32 s%d, s%d, 12" % (sTmp, sTmp))
e("s_and_b32 s%d, s62, 3" % sTmp2)
e("s_lshl_b32 s%d, s%d, 4" % (sTmp2, sTmp2))
e("s_add_u32 s%d, s%d, s%d" % (sTmp, sTmp, sTmp2))
e("s_lshl_b32 s%d, s2, 13" % sTmp2)
e("s_add_u32 s%d, s%d, s%d" % (sTmp, sTmp, sTmp2))
e("s_waitcnt lgkmcnt(0)")
e("s_barrier")
SM = 24
for w in range(NW):
    e("ds_read_b64 %s, v%d offset:%d" % (d2(SM + 2 * w), vt[4], w * 1024))
OR = 56
NR = 2 * UPW
for w in range(NW):
    for hh in range(NR):
        e("ds_read_b128 %s, v%d offset:%d" % (q(OR + (w * NR + hh) * 4), vt[3] if w < 4 else vt[5], (w % 4) * 16384 + hh * 1024))
e("s_waitcnt lgkmcnt(15)")
ms = [SM + 2 * w for w in range(NW)]
e("v_max3_f32 v2, v%d, v%d, v%d" % tuple(ms[0:3]))
k = 3
while k + 1 < NW:
    e("v_max3_f32 v2, v2, v%d, v%d" % (ms[k], ms[k + 1])); k += 2
if k < NW: e("v_max_f32 v2, v2, v%d" % ms[k])
for x in ms: e("v_sub_f32 v%d, v%d, v2" % (x, x))
for x in ms: e("v_mul_f32 v%d, s%d, v%d" % (x, sC, x))
for x in ms: e("v_exp_f32 v%d, v%d" % (x, x))
e("s_nop 0")
e("v_mul_f32 v3, v%d, v%d" % (SM, SM + 1))
for w in range(1, NW):
    e("v_fmac_f32 v3, v%d, v%d" % (SM + 2 * w, SM + 2 * w + 1))
e("v_rcp_f32 v3, v3")
AC = 120; NA = 4 * NR
for w in range(NW):
    e("s_waitcnt lgkmcnt(%d)" % (16 - NR * (w + 1)))
    for k in range(NA):
        if w == 0: e("v_mul_f32 v%d, v%d, v%d" % (AC + k, SM, OR + k))
        else: e("v_fmac_f32 v%d, v%d, v%d" % (AC + k, SM + 2 * w, OR + w * NA + k))
for k in range(NA):
    e("v_mul_f32 v%d, v%d, v3" % (AC + k, AC + k))
for k in range(NA // 2):
    e("v_cvt_pk_bf16_f32 v%d, v%d, v%d" % (40 + k, AC + 2 * k, AC + 1 + 2 * k))
for u in range(UPW):
    e("buffer_store_dwordx4 %s, v1, %s, s%d offen offset:%d" % (q(40 + 4 * u), srd(sO), sTmp, 16 * u))
if STAMP:
    e("s_waitcnt vmcnt(0)")
    stamp(3)
    mksrd(80, 70, 1 << 20)
    e("s_mov_b64 exec, 1")
    e("s_lshl_b32 s84, s85, 3")
    e("s_add_u32 s84, s84, s%d" % sW)
    e("s_lshl_b32 s84, s84, 4")
    e("v_mov_b32 v1, 0")
    for k in range(4): e("v_mov_b32 v%d, s%d" % (4 + k, 72 + k))
    e("buffer_store_dwordx4 v[4:7], v1, s[80:83], s84 offen")
    if NW == 4: e("buffer_store_dwordx4 v[4:7], v1, s[80:83], s84 offen offset:64")
lab("L_end")
e("s_endpgm")
out.append('.section .rodata,"a"')
out.append(".p2align 6")
out.append(".amdhsa_kernel %s_kernel" % NAME)
out.append("  .amdhsa_next_free_vgpr 248")
out.append("  .amdhsa_next_free_sgpr 96")
out.append("  .amdhsa_accum_offset 248")
out.append("  .amdhsa_group_segment_fixed_size 0")
out.append("  .amdhsa_kernarg_size 72")
out.append("  .amdhsa_user_sgpr_count 2")
out.append("  .amdhsa_user_sgpr_kernarg_segment_ptr 1")
out.append("  .amdhsa_system_sgpr_workgroup_id_x 1")
out.append(".end_amdhsa_kernel")
print("\n".join(out))
```

```python
import struct, sys, math
NAME = "standalone__tree_speculative_verify_tree_attention_over_candidate_token_tree__sampling"
def f32hex(x): return "0x%08x" % struct.unpack("<I", struct.pack("<f", x))[0]
SCALE = 128 ** -0.5
C = SCALE * math.log2(math.e)
BIG = 1e9 / SCALE
def opt(name, dflt):
    v = [a[len(name)+1:] for a in sys.argv if a.startswith(name + "=")]
    return type(dflt)(v[0]) if v else dflt
POL = opt("pol", "nt"); NTK = NTV = (" " + POL.replace("+", " ")) if POL != "none" else ""
STAMP = "stamp" in sys.argv
NW = opt("nw", 8); DLY = opt("dly", 0); NIT = 32 // NW
HB = NW * 8192; ITSTRIDE = 2 * HB; STATS = NW * 16384
TREE_IT = opt("treeit", 2)
UPW = 8 // NW

out = []
def e(s): out.append("    " + s)
def lab(s): out.append(s + ":")
def q(r): return "v[%d:%d]" % (r, r + 3)
def d2(r): return "v[%d:%d]" % (r, r + 1)
vKd = [1, 2, 3, 4]; vKr = [5, 6, 7, 8]; vVo = 9
vm = [10, 11]; vl = [12, 13]; val = [14, 15]; vmc = [16, 17]
vt = [18, 19, 20, 21, 22, 23]
def Q(qb, s): return 24 + (qb * 4 + s) * 4
def O(blk, qb): return 56 + (blk * 2 + qb) * 4
def V(h, n): return 120 + h * 32 + n * 4
def S(h, kb, qb): return 184 + ((h * 2 + kb) * 2 + qb) * 4
def T(i): return 216 + 4 * i
sK, sV, sQ, sKT, sVT, sMK, sO = 20, 24, 28, 32, 36, 40, 44
def srd(r): return "s[%d:%d]" % (r, r + 3)
sW = 48; sLds = 49; sIt = 50
nxt = [52, 53, 54, 55]
cur = [88, 89, 90, 91]
sC = 56; sSelLo = 57; sSelHi = 58; sBig = 59; sTmp = 60; sTmp2 = 61; sOOB = 63

for l in open("cdna_kernels/%s.s.ref" % NAME).read().split("\n"):
    if l.startswith("; @launch"): break
    out.append(l)
TREE = STATS + NW * 1024
LDS_BYTES = max(TREE + 4096, 98304)
out.append("; @launch grid=(256,1,1) block=(%d,1,1) lds=%d" % (NW * 64, LDS_BYTES))
out.append('.amdgcn_target "amdgcn-amd-amdhsa--gfx950"')
out.append(".text")
out.append(".globl %s_kernel" % NAME)
out.append(".p2align 8")
out.append(".type %s_kernel,@function" % NAME)
lab("%s_kernel" % NAME)
e("s_cmp_ge_u32 s2, 256")
e("s_cbranch_scc1 L_end")
e("s_load_dwordx8 s[4:11], s[0:1], 0")
e("s_mov_b32 s85, s2")
if "map" in sys.argv:
    e("s_and_b32 s3, s2, 7")
    e("s_lshl_b32 s3, s3, 5")
    e("s_lshr_b32 s2, s2, 3")
    e("s_or_b32 s2, s2, s3")
e("s_load_dwordx4 s[12:15], s[0:1], 32")
e("s_load_dwordx2 s[16:17], s[0:1], 48")
def stamp(k):
    if STAMP:
        e("s_memrealtime s[66:67]")
        e("s_waitcnt lgkmcnt(0)")
        e("s_mov_b32 s%d, s66" % (72 + k))
if STAMP:
    e("s_load_dwordx4 s[68:71], s[0:1], 56")
    e("s_memrealtime s[66:67]")
e("v_lshrrev_b32 v18, 6, v0")
e("v_and_b32 v0, 63, v0")
e("v_readfirstlane_b32 s%d, v18" % sW)
e("v_and_b32 v19, 15, v0")
e("v_lshrrev_b32 v20, 4, v0")
e("v_xor_b32 v21, v19, v20")
e("v_lshlrev_b32 v21, 4, v21")
e("v_lshl_add_u32 v%d, v20, 8, v21" % vKd[0])
for j in range(1, 4):
    e("v_xor_b32 v%d, %d, v%d" % (vKd[j], 64 * j, vKd[0]))
e("s_lshl_b32 s%d, s%d, 14" % (sLds, sW))
e("v_lshl_add_u32 v22, v19, 8, v21")
e("v_add_u32 v%d, s%d, v22" % (vKr[0], sLds))
for s in range(1, 4):
    e("v_xor_b32 v%d, %d, v%d" % (vKr[s], 64 * s, vKr[0]))
e("v_lshlrev_b32 v22, 4, v19")
e("v_lshl_add_u32 v%d, v20, 10, v22" % vVo)
e("v_lshlrev_b32 v22, 4, v20")
e("v_lshl_add_u32 v23, v19, 8, v22")
e("s_lshl_b32 s%d, s2, 19" % nxt[0])
e("s_lshl_b32 s%d, s%d, 13" % (sTmp, sW))
e("s_add_u32 s%d, s%d, s%d" % (nxt[0], nxt[0], sTmp))
e("s_add_u32 s%d, s%d, 4096" % (nxt[1], nxt[0]))
e("s_add_u32 s%d, s%d, %d" % (nxt[2], nxt[0], HB))
e("s_add_u32 s%d, s%d, %d" % (nxt[3], nxt[0], HB + 4096))
e("s_lshl_b32 s%d, s2, 13" % sTmp)
e("s_add_u32 s%d, s%d, 4096" % (sTmp2, sTmp))
e("s_mov_b32 s%d, %s" % (sC, f32hex(C)))
e("s_mov_b32 s%d, 0x05040100" % sSelLo)
e("s_mov_b32 s%d, 0x07060302" % sSelHi)
e("s_mov_b32 s%d, %s" % (sBig, f32hex(BIG)))
e("s_mov_b32 s%d, 0x80000000" % sOOB)
e("s_waitcnt lgkmcnt(0)")
if STAMP: e("s_mov_b32 s72, s66")
def mksrd(r, p, nbytes):
    e("s_mov_b32 s%d, s%d" % (r, p))
    e("s_and_b32 s%d, s%d, 0xffff" % (r + 1, p + 1))
    e("s_mov_b32 s%d, 0x%x" % (r + 2, nbytes))
    e("s_mov_b32 s%d, 0x00020000" % (r + 3))
mksrd(sK, 6, 32 * 8 * 2048 * 128 * 2)
def dmaK(h, offs):
    s0, s1 = offs[2 * h], offs[2 * h + 1]
    e("s_add_u32 m0, s%d, %d" % (sLds, h * 8192))
    e("s_nop 0")
    for j in range(4):
        e("buffer_load_dwordx4 v%d, %s, s%d offen offset:%d%s lds" % (vKd[j], srd(sK), s0, 1024 * j, NTK))
    e("s_add_u32 m0, s%d, %d" % (sLds, h * 8192 + 4096))
    e("s_nop 0")
    for j in range(4):
        e("buffer_load_dwordx4 v%d, %s, s%d offen offset:%d%s lds" % (vKd[j], srd(sK), s1, 1024 * j, NTK))
def loadV(h, offs):
    s0, s1 = offs[2 * h], offs[2 * h + 1]
    for n in range(8):
        e("buffer_load_dwordx4 %s, v%d, %s, s%d offen offset:%d%s" % (q(V(h, n)), vVo, srd(sV), s0 if n < 4 else s1, 256 * (n % 4), NTV))
def issue(g, offs):
    if g < 2: dmaK(g, offs)
    else: loadV(g - 2, offs)
def issue_after(p):
    g = p - DLY
    if g >= 0: issue(g, nxt)
    else: issue(g + 4, cur)
issue(0, nxt)
mksrd(sQ, 4, 32 * 32 * 8 * 128 * 2)
mksrd(sV, 8, 32 * 8 * 2048 * 128 * 2)
for qb in range(2):
    for s in range(4):
        e("buffer_load_dwordx4 %s, v23, %s, s%d offen offset:%d" % (q(Q(qb, s)), srd(sQ), sTmp if qb == 0 else sTmp2, 64 * s))
for g in range(1, 4 - DLY): issue(g, nxt)
mksrd(sKT, 10, 32 * 8 * 8 * 128 * 2)
mksrd(sVT, 12, 32 * 8 * 8 * 128 * 2)
mksrd(sMK, 14, 32 * 8 * 8 * 2)
mksrd(sO, 16, 32 * 32 * 8 * 128 * 2)
e("s_cmp_lg_u32 s%d, 0" % sW)
e("s_cbranch_scc1 L_notree_ld")
e("s_lshl_b32 s%d, s2, 11" % sTmp)
e("v_lshlrev_b32 v21, 4, v0")
e("s_mov_b32 m0, %d" % TREE)
e("s_nop 0")
e("buffer_load_dwordx4 v21, %s, s%d offen lds" % (srd(sKT), sTmp))
e("buffer_load_dwordx4 v21, %s, s%d offen offset:1024 lds" % (srd(sKT), sTmp))
e("s_mov_b32 m0, %d" % (TREE + 2048))
e("s_nop 0")
e("buffer_load_dwordx4 v21, %s, s%d offen lds" % (srd(sVT), sTmp))
e("buffer_load_dwordx4 v21, %s, s%d offen offset:1024 lds" % (srd(sVT), sTmp))
e("v_mov_b32 v22, s%d" % sOOB)
e("v_cmp_gt_u32 vcc, 2, v20")
e("v_and_b32 v21, 7, v19")
e("v_lshlrev_b32 v21, 4, v21")
e("v_lshl_add_u32 v21, v20, 3, v21")
e("v_cndmask_b32 v21, v22, v21, vcc")
e("s_lshr_b32 s%d, s2, 3" % sTmp)
e("s_lshl_b32 s%d, s%d, 7" % (sTmp, sTmp))
e("buffer_load_dwordx2 v[248:249], v21, %s, s%d offen" % (srd(sMK), sTmp))
lab("L_notree_ld")
VMW = (3 - DLY) * 8

def xreduce(op, regs, tmps):
    for sw in ("v_permlane32_swap_b32", "v_permlane16_swap_b32"):
        for r, t in zip(regs, tmps): e("v_mov_b32 v%d, v%d" % (t, r))
        e("s_nop 1")
        for r, t in zip(regs, tmps): e("%s v%d, v%d" % (sw, r, t))
        e("s_nop 0")
        for r, t in zip(regs, tmps): e("%s v%d, v%d, v%d" % (op, r, r, t))

e("s_mov_b32 s%d, 0" % sIt)
e("s_cmp_eq_u32 s%d, 0" % sW)
e("s_cselect_b32 s51, %d, 99" % TREE_IT)
for r in range(64): e("v_mov_b32 v%d, 0" % (56 + r))
for qb in range(2):
    e("v_mov_b32 v%d, 0xff800000" % vm[qb])
    e("v_mov_b32 v%d, 0" % vl[qb])

lab("L_loop")
e("s_cmp_eq_u32 s%d, s51" % sIt)
e("s_cbranch_scc1 L_tree")
lab("L_loop2")
for k in range(4): e("s_mov_b32 s%d, s%d" % (cur[k], nxt[k]))
e("s_add_u32 s%d, s%d, %d" % (sTmp, cur[0], ITSTRIDE))
e("s_cmp_lt_u32 s%d, %d" % (sIt, NIT - 1))
e("s_cselect_b32 s%d, s%d, s%d" % (nxt[0], sTmp, sOOB))
e("s_add_u32 s%d, s%d, 4096" % (nxt[1], nxt[0]))
e("s_add_u32 s%d, s%d, %d" % (nxt[2], nxt[0], HB))
e("s_add_u32 s%d, s%d, %d" % (nxt[3], nxt[0], HB + 4096))
def qk(h):
    e("s_waitcnt vmcnt(%d)" % VMW)
    if STAMP and h == 0:
        e("s_cmp_lg_u32 s%d, 0" % sIt)
        e("s_cbranch_scc1 L_nostamp")
        stamp(1)
        lab("L_nostamp")
    for kb in range(2):
        for s in range(4):
            e("ds_read_b128 %s, v%d offset:%d" % (q(T(kb * 4 + s)), vKr[s], h * 8192 + kb * 4096))
    for kb in range(2):
        for s in range(4):
            e("s_waitcnt lgkmcnt(%d)" % (7 - kb * 4 - s))
            for qb in range(2):
                e("v_mfma_f32_16x16x32_bf16 %s, %s, %s, %s" % (q(S(h, kb, qb)), q(T(kb * 4 + s)), q(Q(qb, s)), "0" if s == 0 else q(S(h, kb, qb))))
    issue_after(h)
qk(0)
qk(1)
for qb in range(2):
    vals = [S(h, kb, qb) + r for h in range(2) for kb in range(2) for r in range(4)]
    e("v_max3_f32 v%d, v%d, v%d, v%d" % (vt[qb], vals[0], vals[1], vm[qb]))
    for k in range(2, 16, 2):
        e("v_max3_f32 v%d, v%d, v%d, v%d" % (vt[qb], vals[k], vals[k + 1], vt[qb]))
xreduce("v_max_f32", vt[0:2], vt[2:4])
for qb in range(2):
    e("v_sub_f32 v%d, v%d, v%d" % (val[qb], vm[qb], vt[qb]))
    e("v_mul_f32 v%d, s%d, v%d" % (vmc[qb], sC, vt[qb]))
    e("v_mul_f32 v%d, s%d, v%d" % (val[qb], sC, val[qb]))
    e("v_mov_b32 v%d, v%d" % (vm[qb], vt[qb]))
for qb in range(2):
    e("v_exp_f32 v%d, v%d" % (val[qb], val[qb]))
allS = [(h, kb, qb, r) for h in range(2) for kb in range(2) for qb in range(2) for r in range(4)]
for (h, kb, qb, r) in allS:
    x = S(h, kb, qb) + r
    e("v_fma_f32 v%d, v%d, s%d, -v%d" % (x, x, sC, vmc[qb]))
for (h, kb, qb, r) in allS:
    x = S(h, kb, qb) + r
    e("v_exp_f32 v%d, v%d" % (x, x))
for blk in range(8):
    for qb in range(2):
        for hh in range(2):
            o = O(blk, qb) + 2 * hh
            e("v_pk_mul_f32 %s, %s, %s op_sel:[0,%d] op_sel_hi:[1,%d]" % (d2(o), d2(o), d2(val[0]), qb, qb))
for qb in range(2):
    vals = [S(h, kb, qb) + r for h in range(2) for kb in range(2) for r in range(4)]
    e("v_add_f32 v%d, v%d, v%d" % (vt[qb], vals[0], vals[1]))
    e("v_add_f32 v%d, v%d, v%d" % (vt[2 + qb], vals[2], vals[3]))
    for k in range(4, 16, 2):
        e("v_add_f32 v%d, v%d, v%d" % (vt[qb], vt[qb], vals[k]))
        e("v_add_f32 v%d, v%d, v%d" % (vt[2 + qb], vt[2 + qb], vals[k + 1]))
    e("v_add_f32 v%d, v%d, v%d" % (vt[qb], vt[qb], vt[2 + qb]))
    e("v_fma_f32 v%d, v%d, v%d, v%d" % (vl[qb], vl[qb], val[qb], vt[qb]))
for h in range(2):
    for qb in range(2):
        a, b = S(h, 0, qb), S(h, 1, qb)
        e("v_cvt_pk_bf16_f32 v%d, v%d, v%d" % (a, a, a + 1))
        e("v_cvt_pk_bf16_f32 v%d, v%d, v%d" % (a + 1, a + 2, a + 3))
        e("v_cvt_pk_bf16_f32 v%d, v%d, v%d" % (a + 2, b, b + 1))
        e("v_cvt_pk_bf16_f32 v%d, v%d, v%d" % (a + 3, b + 2, b + 3))
def pv(h):
    e("s_waitcnt vmcnt(%d)" % VMW)
    def perms(blk):
        j, ee = blk // 2, blk % 2
        for qq in range(4):
            e("v_perm_b32 v%d, v%d, v%d, s%d" % (T(blk) + qq, V(h, 2 * qq + 1) + j, V(h, 2 * qq) + j, sSelHi if ee else sSelLo))
    perms(0)
    for blk in range(8):
        if blk < 7: perms(blk + 1)
        else: issue_after(2 + h)
        for qb in range(2):
            e("v_mfma_f32_16x16x32_bf16 %s, %s, %s, %s" % (q(O(blk, qb)), q(T(blk)), q(S(h, 0, qb)), q(O(blk, qb))))
pv(0)
pv(1)
e("s_add_u32 s%d, s%d, 1" % (sIt, sIt))
e("s_cmp_lt_u32 s%d, %d" % (sIt, NIT))
e("s_cbranch_scc1 L_loop")

stamp(2)
xreduce("v_add_f32", vl, vt[0:2])
e("v_lshlrev_b32 v%d, 4, v0" % vt[2])
e("v_add_u32 v%d, s%d, v%d" % (vt[3], sLds, vt[2]))
e("s_lshl_b32 s%d, s%d, 10" % (sTmp, sW))
e("s_add_u32 s%d, s%d, %d" % (sTmp, sTmp, STATS))
e("v_add_u32 v%d, s%d, v%d" % (vt[4], sTmp, vt[2]))
e("v_mov_b32 v%d, v%d" % (T(0), vm[0]))
e("v_mov_b32 v%d, v%d" % (T(0) + 1, vl[0]))
e("v_mov_b32 v%d, v%d" % (T(0) + 2, vm[1]))
e("v_mov_b32 v%d, v%d" % (T(0) + 3, vl[1]))
e("s_waitcnt vmcnt(0)")
e("ds_write_b128 v%d, %s" % (vt[4], q(T(0))))
for qb in range(2):
    for r in range(4):
        u = qb * 4 + r
        for blk in range(8):
            e("v_mov_b32 v%d, v%d" % (120 + u * 8 + blk, O(blk, qb) + r))
        for hh in range(2):
            e("ds_write_b128 v%d, %s offset:%d" % (vt[3], q(120 + u * 8 + hh * 4), u * 2048 + hh * 1024))
e("s_mul_i32 s62, s%d, %d" % (sW, UPW))
e("s_lshr_b32 s%d, s62, 2" % sTmp)
e("s_lshl_b32 s%d, s%d, 3" % (sTmp2, sTmp))
e("s_add_u32 s%d, s%d, %d" % (sTmp2, sTmp2, STATS))
e("v_add_u32 v%d, s%d, v%d" % (vt[4], sTmp2, vt[2]))
e("s_lshl_b32 s%d, s62, 11" % sTmp2)
e("v_add_u32 v%d, s%d, v%d" % (vt[3], sTmp2, vt[2]))
e("v_add_u32 v%d, 0x10000, v%d" % (vt[5], vt[3]))
e("v_and_b32 v1, 15, v0")
e("v_lshrrev_b32 v2, 4, v0")
e("v_lshlrev_b32 v1, 8, v1")
e("v_lshl_add_u32 v1, v2, 6, v1")
e("s_lshl_b32 s%d, s%d, 12" % (sTmp, sTmp))
e("s_and_b32 s%d, s62, 3" % sTmp2)
e("s_lshl_b32 s%d, s%d, 4" % (sTmp2, sTmp2))
e("s_add_u32 s%d, s%d, s%d" % (sTmp, sTmp, sTmp2))
e("s_lshl_b32 s%d, s2, 13" % sTmp2)
e("s_add_u32 s%d, s%d, s%d" % (sTmp, sTmp, sTmp2))
e("s_waitcnt lgkmcnt(0)")
e("s_barrier")
SM = 24
for w in range(NW):
    e("ds_read_b64 %s, v%d offset:%d" % (d2(SM + 2 * w), vt[4], w * 1024))
OR = 56
NR = 2 * UPW
for w in range(NW):
    for hh in range(NR):
        e("ds_read_b128 %s, v%d offset:%d" % (q(OR + (w * NR + hh) * 4), vt[3] if w < 4 else vt[5], (w % 4) * 16384 + hh * 1024))
e("s_waitcnt lgkmcnt(15)")
ms = [SM + 2 * w for w in range(NW)]
e("v_max3_f32 v2, v%d, v%d, v%d" % tuple(ms[0:3]))
k = 3
while k + 1 < NW:
    e("v_max3_f32 v2, v2, v%d, v%d" % (ms[k], ms[k + 1])); k += 2
if k < NW: e("v_max_f32 v2, v2, v%d" % ms[k])
for x in ms: e("v_sub_f32 v%d, v%d, v2" % (x, x))
for x in ms: e("v_mul_f32 v%d, s%d, v%d" % (x, sC, x))
for x in ms: e("v_exp_f32 v%d, v%d" % (x, x))
e("s_nop 0")
e("v_mul_f32 v3, v%d, v%d" % (SM, SM + 1))
for w in range(1, NW):
    e("v_fmac_f32 v3, v%d, v%d" % (SM + 2 * w, SM + 2 * w + 1))
e("v_rcp_f32 v3, v3")
AC = 120; NA = 4 * NR
for w in range(NW):
    e("s_waitcnt lgkmcnt(%d)" % (16 - NR * (w + 1)))
    for k in range(NA):
        if w == 0: e("v_mul_f32 v%d, v%d, v%d" % (AC + k, SM, OR + k))
        else: e("v_fmac_f32 v%d, v%d, v%d" % (AC + k, SM + 2 * w, OR + w * NA + k))
for k in range(NA):
    e("v_mul_f32 v%d, v%d, v3" % (AC + k, AC + k))
for k in range(NA // 2):
    e("v_cvt_pk_bf16_f32 v%d, v%d, v%d" % (40 + k, AC + 2 * k, AC + 1 + 2 * k))
for u in range(UPW):
    e("buffer_store_dwordx4 %s, v1, %s, s%d offen offset:%d" % (q(40 + 4 * u), srd(sO), sTmp, 16 * u))
if STAMP:
    e("s_waitcnt vmcnt(0)")
    stamp(3)
    mksrd(80, 70, 1 << 20)
    e("s_mov_b64 exec, 1")
    e("s_lshl_b32 s84, s85, 3")
    e("s_add_u32 s84, s84, s%d" % sW)
    e("s_lshl_b32 s84, s84, 4")
    e("v_mov_b32 v1, 0")
    for k in range(4): e("v_mov_b32 v%d, s%d" % (4 + k, 72 + k))
    e("buffer_store_dwordx4 v[4:7], v1, s[80:83], s84 offen")
    if NW == 4: e("buffer_store_dwordx4 v[4:7], v1, s[80:83], s84 offen offset:64")
lab("L_end")
e("s_endpgm")

lab("L_tree")
e("v_and_b32 v%d, 7, v0" % vt[0])
e("v_lshrrev_b32 v%d, 4, v0" % vt[1])
e("v_lshlrev_b32 v%d, 4, v%d" % (vt[2], vt[1]))
e("v_lshl_add_u32 v%d, v%d, 8, v%d" % (vt[2], vt[0], vt[2]))
e("v_and_b32 v%d, 1, v%d" % (vt[1], vt[1]))
e("v_and_b32 v%d, 15, v0" % vt[0])
e("v_lshlrev_b32 v%d, 4, v%d" % (vt[0], vt[0]))
e("v_lshl_add_u32 v%d, v%d, 10, v%d" % (vt[3], vt[1], vt[0]))
e("v_add_u32 v%d, %d, v%d" % (vt[2], TREE, vt[2]))
e("v_add_u32 v%d, %d, v%d" % (vt[3], TREE + 2048, vt[3]))
for s_ in range(4):
    e("ds_read_b128 %s, v%d offset:%d" % (q(T(s_)), vt[2], 64 * s_))
for n in range(4):
    e("ds_read_b128 %s, v%d offset:%d" % (q(T(4 + n)), vt[3], 256 * n))
B = S(1, 0, 0)
e("v_lshlrev_b32 v%d, 16, v248" % B)
e("v_and_b32 v%d, 0xffff0000, v248" % (B + 1))
e("v_lshlrev_b32 v%d, 16, v249" % (B + 2))
e("v_and_b32 v%d, 0xffff0000, v249" % (B + 3))
e("v_mov_b32 v%d, s%d" % (vt[2], sBig))
for r in range(4):
    e("v_fma_f32 v%d, v%d, v%d, -v%d" % (B + r, B + r, vt[2], vt[2]))
e("s_waitcnt lgkmcnt(0)")
for s_ in range(4):
    for qb in range(2):
        e("v_mfma_f32_16x16x32_bf16 %s, %s, %s, %s" % (q(S(0, 0, qb)), q(T(s_)), q(Q(qb, s_)), "0" if s_ == 0 else q(S(0, 0, qb))))
e("s_nop 7")
e("s_nop 1")
for qb in range(2):
    for r in range(4):
        e("v_add_f32 v%d, v%d, v%d" % (S(0, 0, qb) + r, S(0, 0, qb) + r, B + r))
for qb in range(2):
    s0 = S(0, 0, qb)
    e("v_max3_f32 v%d, v%d, v%d, v%d" % (vt[qb], s0, s0 + 1, s0 + 2))
    e("v_max3_f32 v%d, v%d, v%d, v%d" % (vt[qb], vt[qb], s0 + 3, vm[qb]))
xreduce("v_max_f32", vt[0:2], vt[2:4])
for qb in range(2):
    e("v_sub_f32 v%d, v%d, v%d" % (val[qb], vm[qb], vt[qb]))
    e("v_mul_f32 v%d, s%d, v%d" % (vmc[qb], sC, vt[qb]))
    e("v_mul_f32 v%d, s%d, v%d" % (val[qb], sC, val[qb]))
    e("v_mov_b32 v%d, v%d" % (vm[qb], vt[qb]))
for qb in range(2):
    e("v_exp_f32 v%d, v%d" % (val[qb], val[qb]))
for qb in range(2):
    for r in range(4):
        x = S(0, 0, qb) + r
        e("v_fma_f32 v%d, v%d, s%d, -v%d" % (x, x, sC, vmc[qb]))
for qb in range(2):
    for r in range(4):
        x = S(0, 0, qb) + r
        e("v_exp_f32 v%d, v%d" % (x, x))
for blk in range(8):
    for qb in range(2):
        for hh in range(2):
            o = O(blk, qb) + 2 * hh
            e("v_pk_mul_f32 %s, %s, %s op_sel:[0,%d] op_sel_hi:[1,%d]" % (d2(o), d2(o), d2(val[0]), qb, qb))
for qb in range(2):
    s0 = S(0, 0, qb)
    e("v_add_f32 v%d, v%d, v%d" % (vt[2 + qb], s0, s0 + 1))
    e("v_add_f32 v%d, v%d, v%d" % (vt[qb], s0 + 2, s0 + 3))
    e("v_add_f32 v%d, v%d, v%d" % (vt[qb], vt[2 + qb], vt[qb]))
    e("v_fma_f32 v%d, v%d, v%d, v%d" % (vl[qb], vl[qb], val[qb], vt[qb]))
    e("v_cvt_pk_bf16_f32 v%d, v%d, v%d" % (s0, s0, s0 + 1))
    e("v_cvt_pk_bf16_f32 v%d, v%d, v%d" % (s0 + 1, s0 + 2, s0 + 3))
TB = S(1, 0, 0)
for blk in range(8):
    j, ee = blk // 2, blk % 2
    for qq in range(2):
        e("v_perm_b32 v%d, v%d, v%d, s%d" % (TB + 2 * blk + qq, T(4 + 2 * qq + 1) + j, T(4 + 2 * qq) + j, sSelHi if ee else sSelLo))
e("s_nop 1")
for blk in range(8):
    for qb in range(2):
        e("v_mfma_f32_16x16x16_bf16 %s, %s, %s, %s" % (q(O(blk, qb)), d2(TB + 2 * blk), d2(S(0, 0, qb)), q(O(blk, qb))))
e("s_nop 7")
e("s_branch L_loop2")
out.append('.section .rodata,"a"')
out.append(".p2align 6")
out.append(".amdhsa_kernel %s_kernel" % NAME)
out.append("  .amdhsa_next_free_vgpr 252")
out.append("  .amdhsa_next_free_sgpr 96")
out.append("  .amdhsa_accum_offset 252")
out.append("  .amdhsa_group_segment_fixed_size 0")
out.append("  .amdhsa_kernarg_size 72")
out.append("  .amdhsa_user_sgpr_count 2")
out.append("  .amdhsa_user_sgpr_kernarg_segment_ptr 1")
out.append("  .amdhsa_system_sgpr_workgroup_id_x 1")
out.append(".end_amdhsa_kernel")
print("\n".join(out))
```

```python
import struct, sys, math
NAME = "standalone__tree_speculative_verify_tree_attention_over_candidate_token_tree__sampling"
def f32hex(x): return "0x%08x" % struct.unpack("<I", struct.pack("<f", x))[0]
SCALE = 128 ** -0.5
C = SCALE * math.log2(math.e)
BIG = 1e9 / SCALE
def opt(name, dflt):
    v = [a[len(name)+1:] for a in sys.argv if a.startswith(name + "=")]
    return type(dflt)(v[0]) if v else dflt
POL = opt("pol", "nt"); NTK = NTV = (" " + POL.replace("+", " ")) if POL != "none" else ""
STAMP = "stamp" in sys.argv
NW = opt("nw", 8); DLY = opt("dly", 0); NIT = 32 // NW
HB = NW * 8192; ITSTRIDE = 2 * HB; STATS = NW * 16384
TREE_IT = opt("treeit", 3)
UPW = 8 // NW

out = []
def e(s): out.append("    " + s)
def lab(s): out.append(s + ":")
def q(r): return "v[%d:%d]" % (r, r + 3)
def d2(r): return "v[%d:%d]" % (r, r + 1)
vKd = [1, 2, 3, 4]; vKr = [5, 6, 7, 8]; vVo = 9
vm = [10, 11]; vl = [12, 13]; val = [14, 15]; vmc = [16, 17]
vt = [18, 19, 20, 21, 22, 23]
def Q(qb, s): return 24 + (qb * 4 + s) * 4
def O(blk, qb): return 56 + (blk * 2 + qb) * 4
def V(h, n): return 120 + h * 32 + n * 4
def S(h, kb, qb): return 184 + ((h * 2 + kb) * 2 + qb) * 4
def T(i): return 216 + 4 * i
sK, sV, sQ, sKT, sVT, sMK, sO = 20, 24, 28, 32, 36, 40, 44
def srd(r): return "s[%d:%d]" % (r, r + 3)
sW = 48; sLds = 49; sIt = 50
nxt = [52, 53, 54, 55]
cur = [88, 89, 90, 91]
sC = 56; sSelLo = 57; sSelHi = 58; sBig = 59; sTmp = 60; sTmp2 = 61; sOOB = 63

for l in open("cdna_kernels/%s.s.ref" % NAME).read().split("\n"):
    if l.startswith("; @launch"): break
    out.append(l)
TREE = STATS + NW * 1024
LDS_BYTES = max(TREE + 4096, 98304)
out.append("; @launch grid=(256,1,1) block=(%d,1,1) lds=%d" % (NW * 64, LDS_BYTES))
out.append('.amdgcn_target "amdgcn-amd-amdhsa--gfx950"')
out.append(".text")
out.append(".globl %s_kernel" % NAME)
out.append(".p2align 8")
out.append(".type %s_kernel,@function" % NAME)
lab("%s_kernel" % NAME)
e("s_cmp_ge_u32 s2, 256")
e("s_cbranch_scc1 L_end")
e("s_load_dwordx8 s[4:11], s[0:1], 0")
e("s_mov_b32 s85, s2")
if "map" in sys.argv:
    e("s_and_b32 s3, s2, 7")
    e("s_lshl_b32 s3, s3, 5")
    e("s_lshr_b32 s2, s2, 3")
    e("s_or_b32 s2, s2, s3")
e("s_load_dwordx4 s[12:15], s[0:1], 32")
e("s_load_dwordx2 s[16:17], s[0:1], 48")
def stamp(k):
    if STAMP:
        e("s_memrealtime s[66:67]")
        e("s_waitcnt lgkmcnt(0)")
        e("s_mov_b32 s%d, s66" % (72 + k))
if STAMP:
    e("s_load_dwordx4 s[68:71], s[0:1], 56")
    e("s_memrealtime s[66:67]")
e("v_lshrrev_b32 v18, 6, v0")
e("v_and_b32 v0, 63, v0")
e("v_readfirstlane_b32 s%d, v18" % sW)
e("v_and_b32 v19, 15, v0")
e("v_lshrrev_b32 v20, 4, v0")
e("v_xor_b32 v21, v19, v20")
e("v_lshlrev_b32 v21, 4, v21")
e("v_lshl_add_u32 v%d, v20, 8, v21" % vKd[0])
for j in range(1, 4):
    e("v_xor_b32 v%d, %d, v%d" % (vKd[j], 64 * j, vKd[0]))
e("s_lshl_b32 s%d, s%d, 14" % (sLds, sW))
e("v_lshl_add_u32 v22, v19, 8, v21")
e("v_add_u32 v%d, s%d, v22" % (vKr[0], sLds))
for s in range(1, 4):
    e("v_xor_b32 v%d, %d, v%d" % (vKr[s], 64 * s, vKr[0]))
e("v_lshlrev_b32 v22, 4, v19")
e("v_lshl_add_u32 v%d, v20, 10, v22" % vVo)
e("v_lshlrev_b32 v22, 4, v20")
e("v_lshl_add_u32 v23, v19, 8, v22")
e("s_lshl_b32 s%d, s2, 19" % nxt[0])
e("s_lshl_b32 s%d, s%d, 13" % (sTmp, sW))
e("s_add_u32 s%d, s%d, s%d" % (nxt[0], nxt[0], sTmp))
e("s_add_u32 s%d, s%d, 4096" % (nxt[1], nxt[0]))
e("s_add_u32 s%d, s%d, %d" % (nxt[2], nxt[0], HB))
e("s_add_u32 s%d, s%d, %d" % (nxt[3], nxt[0], HB + 4096))
e("s_lshl_b32 s%d, s2, 13" % sTmp)
e("s_add_u32 s%d, s%d, 4096" % (sTmp2, sTmp))
e("s_mov_b32 s%d, %s" % (sC, f32hex(C)))
e("s_mov_b32 s%d, 0x05040100" % sSelLo)
e("s_mov_b32 s%d, 0x07060302" % sSelHi)
e("s_mov_b32 s%d, %s" % (sBig, f32hex(BIG)))
e("s_mov_b32 s%d, 0x80000000" % sOOB)
e("s_waitcnt lgkmcnt(0)")
if STAMP: e("s_mov_b32 s72, s66")
def mksrd(r, p, nbytes):
    e("s_mov_b32 s%d, s%d" % (r, p))
    e("s_and_b32 s%d, s%d, 0xffff" % (r + 1, p + 1))
    e("s_mov_b32 s%d, 0x%x" % (r + 2, nbytes))
    e("s_mov_b32 s%d, 0x00020000" % (r + 3))
mksrd(sK, 6, 32 * 8 * 2048 * 128 * 2)
def dmaK(h, offs):
    s0, s1 = offs[2 * h], offs[2 * h + 1]
    e("s_add_u32 m0, s%d, %d" % (sLds, h * 8192))
    e("s_nop 0")
    for j in range(4):
        e("buffer_load_dwordx4 v%d, %s, s%d offen offset:%d%s lds" % (vKd[j], srd(sK), s0, 1024 * j, NTK))
    e("s_add_u32 m0, s%d, %d" % (sLds, h * 8192 + 4096))
    e("s_nop 0")
    for j in range(4):
        e("buffer_load_dwordx4 v%d, %s, s%d offen offset:%d%s lds" % (vKd[j], srd(sK), s1, 1024 * j, NTK))
def loadV(h, offs):
    s0, s1 = offs[2 * h], offs[2 * h + 1]
    for n in range(8):
        e("buffer_load_dwordx4 %s, v%d, %s, s%d offen offset:%d%s" % (q(V(h, n)), vVo, srd(sV), s0 if n < 4 else s1, 256 * (n % 4), NTV))
def issue(g, offs):
    if g < 2: dmaK(g, offs)
    else: loadV(g - 2, offs)
def issue_after(p):
    g = p - DLY
    if g >= 0: issue(g, nxt)
    else: issue(g + 4, cur)
issue(0, nxt)
mksrd(sQ, 4, 32 * 32 * 8 * 128 * 2)
mksrd(sV, 8, 32 * 8 * 2048 * 128 * 2)
for qb in range(2):
    for s in range(4):
        e("buffer_load_dwordx4 %s, v23, %s, s%d offen offset:%d" % (q(Q(qb, s)), srd(sQ), sTmp if qb == 0 else sTmp2, 64 * s))
for g in range(1, 4 - DLY): issue(g, nxt)
mksrd(sKT, 10, 32 * 8 * 8 * 128 * 2)
mksrd(sVT, 12, 32 * 8 * 8 * 128 * 2)
mksrd(sMK, 14, 32 * 8 * 8 * 2)
mksrd(sO, 16, 32 * 32 * 8 * 128 * 2)
VMW = (3 - DLY) * 8

def xreduce(op, regs, tmps):
    for sw in ("v_permlane32_swap_b32", "v_permlane16_swap_b32"):
        for r, t in zip(regs, tmps): e("v_mov_b32 v%d, v%d" % (t, r))
        e("s_nop 1")
        for r, t in zip(regs, tmps): e("%s v%d, v%d" % (sw, r, t))
        e("s_nop 0")
        for r, t in zip(regs, tmps): e("%s v%d, v%d, v%d" % (op, r, r, t))

e("s_mov_b32 s%d, 0" % sIt)
e("s_cmp_eq_u32 s%d, 0" % sW)
e("s_cselect_b32 s51, %d, 99" % TREE_IT)
e("s_cselect_b32 s62, %d, 99" % (TREE_IT - 2))
for r in range(64): e("v_mov_b32 v%d, 0" % (56 + r))
for qb in range(2):
    e("v_mov_b32 v%d, 0xff800000" % vm[qb])
    e("v_mov_b32 v%d, 0" % vl[qb])

lab("L_loop")
e("s_cmp_eq_u32 s%d, s51" % sIt)
e("s_cbranch_scc1 L_tree")
lab("L_loop2")
e("s_cmp_eq_u32 s%d, s62" % sIt)
e("s_cbranch_scc1 L_treeld")
lab("L_loop3")
for k in range(4): e("s_mov_b32 s%d, s%d" % (cur[k], nxt[k]))
e("s_add_u32 s%d, s%d, %d" % (sTmp, cur[0], ITSTRIDE))
e("s_cmp_lt_u32 s%d, %d" % (sIt, NIT - 1))
e("s_cselect_b32 s%d, s%d, s%d" % (nxt[0], sTmp, sOOB))
e("s_add_u32 s%d, s%d, 4096" % (nxt[1], nxt[0]))
e("s_add_u32 s%d, s%d, %d" % (nxt[2], nxt[0], HB))
e("s_add_u32 s%d, s%d, %d" % (nxt[3], nxt[0], HB + 4096))
def qk(h):
    e("s_waitcnt vmcnt(%d)" % VMW)
    if STAMP and h == 0:
        e("s_cmp_lg_u32 s%d, 0" % sIt)
        e("s_cbranch_scc1 L_nostamp")
        stamp(1)
        lab("L_nostamp")
    for kb in range(2):
        for s in range(4):
            e("ds_read_b128 %s, v%d offset:%d" % (q(T(kb * 4 + s)), vKr[s], h * 8192 + kb * 4096))
    for kb in range(2):
        for s in range(4):
            e("s_waitcnt lgkmcnt(%d)" % (7 - kb * 4 - s))
            for qb in range(2):
                e("v_mfma_f32_16x16x32_bf16 %s, %s, %s, %s" % (q(S(h, kb, qb)), q(T(kb * 4 + s)), q(Q(qb, s)), "0" if s == 0 else q(S(h, kb, qb))))
    issue_after(h)
qk(0)
qk(1)
for qb in range(2):
    vals = [S(h, kb, qb) + r for h in range(2) for kb in range(2) for r in range(4)]
    e("v_max3_f32 v%d, v%d, v%d, v%d" % (vt[qb], vals[0], vals[1], vm[qb]))
    for k in range(2, 16, 2):
        e("v_max3_f32 v%d, v%d, v%d, v%d" % (vt[qb], vals[k], vals[k + 1], vt[qb]))
xreduce("v_max_f32", vt[0:2], vt[2:4])
for qb in range(2):
    e("v_sub_f32 v%d, v%d, v%d" % (val[qb], vm[qb], vt[qb]))
    e("v_mul_f32 v%d, s%d, v%d" % (vmc[qb], sC, vt[qb]))
    e("v_mul_f32 v%d, s%d, v%d" % (val[qb], sC, val[qb]))
    e("v_mov_b32 v%d, v%d" % (vm[qb], vt[qb]))
for qb in range(2):
    e("v_exp_f32 v%d, v%d" % (val[qb], val[qb]))
allS = [(h, kb, qb, r) for h in range(2) for kb in range(2) for qb in range(2) for r in range(4)]
for (h, kb, qb, r) in allS:
    x = S(h, kb, qb) + r
    e("v_fma_f32 v%d, v%d, s%d, -v%d" % (x, x, sC, vmc[qb]))
for (h, kb, qb, r) in allS:
    x = S(h, kb, qb) + r
    e("v_exp_f32 v%d, v%d" % (x, x))
for blk in range(8):
    for qb in range(2):
        for hh in range(2):
            o = O(blk, qb) + 2 * hh
            e("v_pk_mul_f32 %s, %s, %s op_sel:[0,%d] op_sel_hi:[1,%d]" % (d2(o), d2(o), d2(val[0]), qb, qb))
for qb in range(2):
    vals = [S(h, kb, qb) + r for h in range(2) for kb in range(2) for r in range(4)]
    e("v_add_f32 v%d, v%d, v%d" % (vt[qb], vals[0], vals[1]))
    e("v_add_f32 v%d, v%d, v%d" % (vt[2 + qb], vals[2], vals[3]))
    for k in range(4, 16, 2):
        e("v_add_f32 v%d, v%d, v%d" % (vt[qb], vt[qb], vals[k]))
        e("v_add_f32 v%d, v%d, v%d" % (vt[2 + qb], vt[2 + qb], vals[k + 1]))
    e("v_add_f32 v%d, v%d, v%d" % (vt[qb], vt[qb], vt[2 + qb]))
    e("v_fma_f32 v%d, v%d, v%d, v%d" % (vl[qb], vl[qb], val[qb], vt[qb]))
for h in range(2):
    for qb in range(2):
        a, b = S(h, 0, qb), S(h, 1, qb)
        e("v_cvt_pk_bf16_f32 v%d, v%d, v%d" % (a, a, a + 1))
        e("v_cvt_pk_bf16_f32 v%d, v%d, v%d" % (a + 1, a + 2, a + 3))
        e("v_cvt_pk_bf16_f32 v%d, v%d, v%d" % (a + 2, b, b + 1))
        e("v_cvt_pk_bf16_f32 v%d, v%d, v%d" % (a + 3, b + 2, b + 3))
def pv(h):
    e("s_waitcnt vmcnt(%d)" % VMW)
    def perms(blk):
        j, ee = blk // 2, blk % 2
        for qq in range(4):
            e("v_perm_b32 v%d, v%d, v%d, s%d" % (T(blk) + qq, V(h, 2 * qq + 1) + j, V(h, 2 * qq) + j, sSelHi if ee else sSelLo))
    perms(0)
    for blk in range(8):
        if blk < 7: perms(blk + 1)
        else: issue_after(2 + h)
        for qb in range(2):
            e("v_mfma_f32_16x16x32_bf16 %s, %s, %s, %s" % (q(O(blk, qb)), q(T(blk)), q(S(h, 0, qb)), q(O(blk, qb))))
pv(0)
pv(1)
e("s_add_u32 s%d, s%d, 1" % (sIt, sIt))
e("s_cmp_lt_u32 s%d, %d" % (sIt, NIT))
e("s_cbranch_scc1 L_loop")

stamp(2)
xreduce("v_add_f32", vl, vt[0:2])
e("v_lshlrev_b32 v%d, 4, v0" % vt[2])
e("v_add_u32 v%d, s%d, v%d" % (vt[3], sLds, vt[2]))
e("s_lshl_b32 s%d, s%d, 10" % (sTmp, sW))
e("s_add_u32 s%d, s%d, %d" % (sTmp, sTmp, STATS))
e("v_add_u32 v%d, s%d, v%d" % (vt[4], sTmp, vt[2]))
e("v_mov_b32 v%d, v%d" % (T(0), vm[0]))
e("v_mov_b32 v%d, v%d" % (T(0) + 1, vl[0]))
e("v_mov_b32 v%d, v%d" % (T(0) + 2, vm[1]))
e("v_mov_b32 v%d, v%d" % (T(0) + 3, vl[1]))
e("s_waitcnt vmcnt(0)")
e("ds_write_b128 v%d, %s" % (vt[4], q(T(0))))
for qb in range(2):
    for r in range(4):
        u = qb * 4 + r
        for blk in range(8):
            e("v_mov_b32 v%d, v%d" % (120 + u * 8 + blk, O(blk, qb) + r))
        for hh in range(2):
            e("ds_write_b128 v%d, %s offset:%d" % (vt[3], q(120 + u * 8 + hh * 4), u * 2048 + hh * 1024))
e("s_mul_i32 s62, s%d, %d" % (sW, UPW))
e("s_lshr_b32 s%d, s62, 2" % sTmp)
e("s_lshl_b32 s%d, s%d, 3" % (sTmp2, sTmp))
e("s_add_u32 s%d, s%d, %d" % (sTmp2, sTmp2, STATS))
e("v_add_u32 v%d, s%d, v%d" % (vt[4], sTmp2, vt[2]))
e("s_lshl_b32 s%d, s62, 11" % sTmp2)
e("v_add_u32 v%d, s%d, v%d" % (vt[3], sTmp2, vt[2]))
e("v_add_u32 v%d, 0x10000, v%d" % (vt[5], vt[3]))
e("v_and_b32 v1, 15, v0")
e("v_lshrrev_b32 v2, 4, v0")
e("v_lshlrev_b32 v1, 8, v1")
e("v_lshl_add_u32 v1, v2, 6, v1")
e("s_lshl_b32 s%d, s%d, 12" % (sTmp, sTmp))
e("s_and_b32 s%d, s62, 3" % sTmp2)
e("s_lshl_b32 s%d, s%d, 4" % (sTmp2, sTmp2))
e("s_add_u32 s%d, s%d, s%d" % (sTmp, sTmp, sTmp2))
e("s_lshl_b32 s%d, s2, 13" % sTmp2)
e("s_add_u32 s%d, s%d, s%d" % (sTmp, sTmp, sTmp2))
e("s_waitcnt lgkmcnt(0)")
e("s_barrier")
SM = 24
for w in range(NW):
    e("ds_read_b64 %s, v%d offset:%d" % (d2(SM + 2 * w), vt[4], w * 1024))
OR = 56
NR = 2 * UPW
for w in range(NW):
    for hh in range(NR):
        e("ds_read_b128 %s, v%d offset:%d" % (q(OR + (w * NR + hh) * 4), vt[3] if w < 4 else vt[5], (w % 4) * 16384 + hh * 1024))
e("s_waitcnt lgkmcnt(15)")
ms = [SM + 2 * w for w in range(NW)]
e("v_max3_f32 v2, v%d, v%d, v%d" % tuple(ms[0:3]))
k = 3
while k + 1 < NW:
    e("v_max3_f32 v2, v2, v%d, v%d" % (ms[k], ms[k + 1])); k += 2
if k < NW: e("v_max_f32 v2, v2, v%d" % ms[k])
for x in ms: e("v_sub_f32 v%d, v%d, v2" % (x, x))
for x in ms: e("v_mul_f32 v%d, s%d, v%d" % (x, sC, x))
for x in ms: e("v_exp_f32 v%d, v%d" % (x, x))
e("s_nop 0")
e("v_mul_f32 v3, v%d, v%d" % (SM, SM + 1))
for w in range(1, NW):
    e("v_fmac_f32 v3, v%d, v%d" % (SM + 2 * w, SM + 2 * w + 1))
e("v_rcp_f32 v3, v3")
AC = 120; NA = 4 * NR
for w in range(NW):
    e("s_waitcnt lgkmcnt(%d)" % (16 - NR * (w + 1)))
    for k in range(NA):
        if w == 0: e("v_mul_f32 v%d, v%d, v%d" % (AC + k, SM, OR + k))
        else: e("v_fmac_f32 v%d, v%d, v%d" % (AC + k, SM + 2 * w, OR + w * NA + k))
for k in range(NA):
    e("v_mul_f32 v%d, v%d, v3" % (AC + k, AC + k))
for k in range(NA // 2):
    e("v_cvt_pk_bf16_f32 v%d, v%d, v%d" % (40 + k, AC + 2 * k, AC + 1 + 2 * k))
for u in range(UPW):
    e("buffer_store_dwordx4 %s, v1, %s, s%d offen offset:%d" % (q(40 + 4 * u), srd(sO), sTmp, 16 * u))
if STAMP:
    e("s_waitcnt vmcnt(0)")
    stamp(3)
    mksrd(80, 70, 1 << 20)
    e("s_mov_b64 exec, 1")
    e("s_lshl_b32 s84, s85, 3")
    e("s_add_u32 s84, s84, s%d" % sW)
    e("s_lshl_b32 s84, s84, 4")
    e("v_mov_b32 v1, 0")
    for k in range(4): e("v_mov_b32 v%d, s%d" % (4 + k, 72 + k))
    e("buffer_store_dwordx4 v[4:7], v1, s[80:83], s84 offen")
    if NW == 4: e("buffer_store_dwordx4 v[4:7], v1, s[80:83], s84 offen offset:64")
lab("L_end")
e("s_endpgm")

lab("L_treeld")
e("s_lshl_b32 s%d, s2, 11" % sTmp)
e("v_lshlrev_b32 v21, 4, v0")
e("s_mov_b32 m0, %d" % TREE)
e("s_nop 0")
e("buffer_load_dwordx4 v21, %s, s%d offen lds" % (srd(sKT), sTmp))
e("buffer_load_dwordx4 v21, %s, s%d offen offset:1024 lds" % (srd(sKT), sTmp))
e("s_mov_b32 m0, %d" % (TREE + 2048))
e("s_nop 0")
e("buffer_load_dwordx4 v21, %s, s%d offen lds" % (srd(sVT), sTmp))
e("buffer_load_dwordx4 v21, %s, s%d offen offset:1024 lds" % (srd(sVT), sTmp))
e("v_lshrrev_b32 v20, 4, v0")
e("v_mov_b32 v22, s%d" % sOOB)
e("v_cmp_gt_u32 vcc, 2, v20")
e("v_and_b32 v21, 7, v0")
e("v_lshlrev_b32 v21, 4, v21")
e("v_lshl_add_u32 v21, v20, 3, v21")
e("v_cndmask_b32 v21, v22, v21, vcc")
e("s_lshr_b32 s%d, s2, 3" % sTmp)
e("s_lshl_b32 s%d, s%d, 7" % (sTmp, sTmp))
e("buffer_load_dwordx2 v[248:249], v21, %s, s%d offen" % (srd(sMK), sTmp))
e("s_branch L_loop3")
lab("L_tree")
e("v_and_b32 v%d, 7, v0" % vt[0])
e("v_lshrrev_b32 v%d, 4, v0" % vt[1])
e("v_lshlrev_b32 v%d, 4, v%d" % (vt[2], vt[1]))
e("v_lshl_add_u32 v%d, v%d, 8, v%d" % (vt[2], vt[0], vt[2]))
e("v_and_b32 v%d, 1, v%d" % (vt[1], vt[1]))
e("v_and_b32 v%d, 15, v0" % vt[0])
e("v_lshlrev_b32 v%d, 4, v%d" % (vt[0], vt[0]))
e("v_lshl_add_u32 v%d, v%d, 10, v%d" % (vt[3], vt[1], vt[0]))
e("v_add_u32 v%d, %d, v%d" % (vt[2], TREE, vt[2]))
e("v_add_u32 v%d, %d, v%d" % (vt[3], TREE + 2048, vt[3]))
for s_ in range(4):
    e("ds_read_b128 %s, v%d offset:%d" % (q(T(s_)), vt[2], 64 * s_))
for n in range(4):
    e("ds_read_b128 %s, v%d offset:%d" % (q(T(4 + n)), vt[3], 256 * n))
B = S(1, 0, 0)
e("v_lshlrev_b32 v%d, 16, v248" % B)
e("v_and_b32 v%d, 0xffff0000, v248" % (B + 1))
e("v_lshlrev_b32 v%d, 16, v249" % (B + 2))
e("v_and_b32 v%d, 0xffff0000, v249" % (B + 3))
e("v_mov_b32 v%d, s%d" % (vt[2], sBig))
for r in range(4):
    e("v_fma_f32 v%d, v%d, v%d, -v%d" % (B + r, B + r, vt[2], vt[2]))
e("s_waitcnt lgkmcnt(0)")
for s_ in range(4):
    for qb in range(2):
        e("v_mfma_f32_16x16x32_bf16 %s, %s, %s, %s" % (q(S(0, 0, qb)), q(T(s_)), q(Q(qb, s_)), "0" if s_ == 0 else q(S(0, 0, qb))))
e("s_nop 7")
e("s_nop 1")
for qb in range(2):
    for r in range(4):
        e("v_add_f32 v%d, v%d, v%d" % (S(0, 0, qb) + r, S(0, 0, qb) + r, B + r))
for qb in range(2):
    s0 = S(0, 0, qb)
    e("v_max3_f32 v%d, v%d, v%d, v%d" % (vt[qb], s0, s0 + 1, s0 + 2))
    e("v_max3_f32 v%d, v%d, v%d, v%d" % (vt[qb], vt[qb], s0 + 3, vm[qb]))
xreduce("v_max_f32", vt[0:2], vt[2:4])
for qb in range(2):
    e("v_sub_f32 v%d, v%d, v%d" % (val[qb], vm[qb], vt[qb]))
    e("v_mul_f32 v%d, s%d, v%d" % (vmc[qb], sC, vt[qb]))
    e("v_mul_f32 v%d, s%d, v%d" % (val[qb], sC, val[qb]))
    e("v_mov_b32 v%d, v%d" % (vm[qb], vt[qb]))
for qb in range(2):
    e("v_exp_f32 v%d, v%d" % (val[qb], val[qb]))
for qb in range(2):
    for r in range(4):
        x = S(0, 0, qb) + r
        e("v_fma_f32 v%d, v%d, s%d, -v%d" % (x, x, sC, vmc[qb]))
for qb in range(2):
    for r in range(4):
        x = S(0, 0, qb) + r
        e("v_exp_f32 v%d, v%d" % (x, x))
for blk in range(8):
    for qb in range(2):
        for hh in range(2):
            o = O(blk, qb) + 2 * hh
            e("v_pk_mul_f32 %s, %s, %s op_sel:[0,%d] op_sel_hi:[1,%d]" % (d2(o), d2(o), d2(val[0]), qb, qb))
for qb in range(2):
    s0 = S(0, 0, qb)
    e("v_add_f32 v%d, v%d, v%d" % (vt[2 + qb], s0, s0 + 1))
    e("v_add_f32 v%d, v%d, v%d" % (vt[qb], s0 + 2, s0 + 3))
    e("v_add_f32 v%d, v%d, v%d" % (vt[qb], vt[2 + qb], vt[qb]))
    e("v_fma_f32 v%d, v%d, v%d, v%d" % (vl[qb], vl[qb], val[qb], vt[qb]))
    e("v_cvt_pk_bf16_f32 v%d, v%d, v%d" % (s0, s0, s0 + 1))
    e("v_cvt_pk_bf16_f32 v%d, v%d, v%d" % (s0 + 1, s0 + 2, s0 + 3))
TB = S(1, 0, 0)
for blk in range(8):
    j, ee = blk // 2, blk % 2
    for qq in range(2):
        e("v_perm_b32 v%d, v%d, v%d, s%d" % (TB + 2 * blk + qq, T(4 + 2 * qq + 1) + j, T(4 + 2 * qq) + j, sSelHi if ee else sSelLo))
e("s_nop 1")
for blk in range(8):
    for qb in range(2):
        e("v_mfma_f32_16x16x16_bf16 %s, %s, %s, %s" % (q(O(blk, qb)), d2(TB + 2 * blk), d2(S(0, 0, qb)), q(O(blk, qb))))
e("s_nop 7")
e("s_branch L_loop2")
out.append('.section .rodata,"a"')
out.append(".p2align 6")
out.append(".amdhsa_kernel %s_kernel" % NAME)
out.append("  .amdhsa_next_free_vgpr 252")
out.append("  .amdhsa_next_free_sgpr 96")
out.append("  .amdhsa_accum_offset 252")
out.append("  .amdhsa_group_segment_fixed_size 0")
out.append("  .amdhsa_kernarg_size 72")
out.append("  .amdhsa_user_sgpr_count 2")
out.append("  .amdhsa_user_sgpr_kernarg_segment_ptr 1")
out.append("  .amdhsa_system_sgpr_workgroup_id_x 1")
out.append(".end_amdhsa_kernel")
print("\n".join(out))
```
